```python
import torch

def _softmax(x, axis=-1):
    return torch.softmax(x, dim=axis)
def _gelu(x):
    return torch.nn.functional.gelu(x, approximate="tanh")
def _silu(x):
    return torch.nn.functional.silu(x)
def _sigmoid(x):
    return torch.sigmoid(x)
def _layernorm(x, axis=-1, eps=1e-5):
    m = x.mean(dim=axis, keepdim=True)
    v = x.var(dim=axis, keepdim=True, unbiased=False)
    return (x - m) / torch.sqrt(v + eps)
def _scatter_add(tgt, idx, src, axis=0):
    return tgt.clone().index_add_(axis, idx, src)
def _segment_sum(src, seg, n):
    out = torch.zeros((n,) + src.shape[1:], dtype=src.dtype)
    return out.index_add_(0, seg, src)
def _pad(x, pw):
    flat = tuple(v for pair in reversed(pw) for v in pair)
    return torch.nn.functional.pad(x, flat)

kernel_name = 'sequential_preLN__mha_block__moe_arch_mod__prompt'

def setup_inputs():

    _w = (lambda a: (lambda t: t.to(torch.bfloat16) if t.is_floating_point() else t)(torch.as_tensor(a)))
    def _A_setup():
        B, S, D, H = 1, 2048, 512, 32
        return {
            "x": _w((lambda *s: torch.randn(*s, dtype=torch.bfloat16) * 0.05)(B, S, D)),
            "wqkv": _w((lambda *s: torch.randn(*s, dtype=torch.bfloat16) * 0.05)(D, 3 * D)),
            "wo": _w((lambda *s: torch.randn(*s, dtype=torch.bfloat16) * 0.05)(D, D)),
        }
    _A_in = _A_setup()

    def _B_setup():
        B, S, D, F, C = 1, 2048, 512, 1376, 8
        return {
            "x": _w((lambda *s: torch.randn(*s, dtype=torch.bfloat16) * 0.05)(B, S, D)),
            "w_r": _w((lambda *s: torch.randn(*s, dtype=torch.bfloat16) * 0.05)(D)),
            "w_gate": _w((lambda *s: torch.randn(*s, dtype=torch.bfloat16) * 0.05)(D, F)),
            "w_up": _w((lambda *s: torch.randn(*s, dtype=torch.bfloat16) * 0.05)(D, F)),
            "w_down": _w((lambda *s: torch.randn(*s, dtype=torch.bfloat16) * 0.05)(F, D)),
        }
    _B_in = _B_setup()

    return {
        "A_x": _A_in["x"],
        "A_wqkv": _A_in["wqkv"],
        "A_wo": _A_in["wo"],
        "B_x": _B_in["x"],
        "B_w_r": _B_in["w_r"],
        "B_w_gate": _B_in["w_gate"],
        "B_w_up": _B_in["w_up"],
        "B_w_down": _B_in["w_down"],
    }

def reference(A_x, A_wqkv, A_wo, B_x, B_w_r, B_w_gate, B_w_up, B_w_down):
    def _A_ref(x, wqkv, wo):
        B, S, D = x.shape
        H = 32
        Dh = D // H
        qkv = (lambda x, *d: x.permute(*d))((x @ wqkv).reshape(B, S, 3, H, Dh), 2, 0, 3, 1, 4)
        q, k, v = qkv[0], qkv[1], qkv[2]
        scores = torch.einsum("bhqd,bhkd->bhqk", q, k) * (Dh ** -0.5)
        p = _softmax(scores, axis=-1)
        o = torch.einsum("bhqk,bhkd->bhqd", p, v)
        return (lambda x, *d: x.permute(*d))(o, 0, 2, 1, 3).reshape(B, S, D) @ wo

    def _B_ref(x, w_r, w_gate, w_up, w_down):
        B, S, D = x.shape
        C = 8
        r = x @ w_r
        idx = torch.argsort(-r, axis=-1)[:, :C]
        idx_e = (lambda x, n, axis: torch.repeat_interleave(x, n, dim=axis))(idx.reshape(B, C, 1), D, axis=2)
        x_sel = (lambda x, i, axis: torch.take_along_dim(x, i, dim=axis))(x, idx_e, axis=1)
        g = _silu(x_sel @ w_gate)
        u = x_sel @ w_up
        y = (g * u) @ w_down
        r_sel = _sigmoid((lambda x, i, axis: torch.take_along_dim(x, i, dim=axis))(r, idx, axis=1))
        y = y * r_sel.reshape(B, C, 1)
        b_off = (torch.arange(B) * S).reshape(B, 1)
        flat_idx = (idx + b_off).reshape(B * C)
        zero = (x * 0.0).reshape(B * S, D)
        upd = _scatter_add(zero, flat_idx, y.reshape(B * C, D), axis=0)
        return x + upd.reshape(B, S, D)

    x = A_x
    h = x + _A_ref(_layernorm(x, axis=-1), A_wqkv, A_wo)
    h2 = h + _B_ref(_layernorm(h, axis=-1), B_w_r, B_w_gate, B_w_up, B_w_down)
    return h2
```

```python
class Asm:
    def __init__(self):
        self.lines = []
        self._lab = 0
    def __call__(self, s):
        for l in s.strip("\n").split("\n"):
            self.lines.append("  " + l.strip())
    def raw(self, s):
        self.lines.append(s)
    def label(self, name):
        self.lines.append(f"{name}:")
    def newlabel(self, pfx="L"):
        self._lab += 1
        return f"{pfx}_{self._lab}"
    def text(self):
        return "\n".join(self.lines) + "\n"

def vr(a, n=1):
    return f"v{a}" if n == 1 else f"v[{a}:{a+n-1}]"
def sr(a, n=1):
    return f"s{a}" if n == 1 else f"s[{a}:{a+n-1}]"

def kernel_begin(a, name):
    a.raw(f".globl {name}")
    a.raw(".p2align 8")
    a.raw(f".type {name},@function")
    a.raw(f"{name}:")

def kernel_desc(name, nvgpr, nsgpr=96):
    acc = (nvgpr + 3) // 4 * 4
    return f""".p2align 6
.amdhsa_kernel {name}
  .amdhsa_next_free_vgpr {nvgpr}
  .amdhsa_next_free_sgpr {nsgpr}
  .amdhsa_accum_offset {acc}
  .amdhsa_group_segment_fixed_size 0
  .amdhsa_kernarg_size 88
  .amdhsa_user_sgpr_count 2
  .amdhsa_user_sgpr_kernarg_segment_ptr 1
  .amdhsa_system_sgpr_workgroup_id_x 1
.end_amdhsa_kernel
"""

def srd(a, d, lo, hi, size, off=0):
    if off:
        a(f"s_add_u32 s{d}, s{lo}, {off}")
        a(f"s_addc_u32 s{d+1}, s{hi}, 0")
    else:
        a(f"s_mov_b32 s{d}, s{lo}")
        a(f"s_mov_b32 s{d+1}, s{hi}")
    a(f"s_mov_b32 s{d+2}, {size}")
    a(f"s_mov_b32 s{d+3}, 0x20000")
```

```python
from asmlib import *
from layout import *
import struct
def f32bits(x):
    return struct.unpack("<I", struct.pack("<f", x))[0]

def bf16r(a, d, s, tmp=None):
    a(f"v_cvt_pk_bf16_f32 v{d}, v{s}, v{s}")
    a(f"v_lshlrev_b32 v{d}, 16, v{d}")

def gen_k1(a, name="qkv_kernel"):
    kernel_begin(a, name)
    XB = 98304
    LANE = 1; VW = 2; VX = 5; XA = 9; WA = 13; ONES = 15; S1 = 16; S2 = 18; CS = 20; T = 23
    XF = 24; WF = 32; ACC = 56; E = 104
    a(f"""
s_cmp_ge_u32 s2, 256
s_cbranch_scc1 {name}_end
s_load_dwordx4 s[4:7], s[0:1], 0
s_load_dwordx2 s[8:9], s[0:1], 80
v_lshrrev_b32 v{T}, 6, v0
v_and_b32 v{LANE}, 63, v0
s_and_b32 s10, s2, 7
v_readfirstlane_b32 s20, v{T}
s_lshr_b32 s11, s2, 3
s_lshr_b32 s21, s10, 1
s_lshl_b32 s21, s21, 2
s_and_b32 s3, s11, 3
s_add_u32 s21, s21, s3            ; mt
s_and_b32 s22, s10, 1
s_lshl_b32 s22, s22, 3
s_lshr_b32 s3, s11, 2
s_add_u32 s22, s22, s3            ; nt
s_lshl_b32 s23, s21, 2
s_add_u32 s23, s23, s20
s_lshl_b32 s28, s23, 15
s_mul_i32 s29, s22, 192
s_lshl_b32 s30, s20, 14
s_add_u32 s30, s30, {XB}
s_mul_i32 s31, s20, 3072
""")
    a(f"s_mul_i32 s3, s20, 192")
    a(f"s_mov_b32 s32, 43691")
    for i in range(3):
        a(f"v_add_u32 v{T}, s3, v{LANE}")
        if i: a(f"v_add_u32 v{T}, {64*i}, v{T}")
        a(f"v_mul_lo_u32 v{E}, v{T}, s32")
        a(f"v_lshrrev_b32 v{E}, 19, v{E}")
        a(f"v_mul_u32_u24 v{E+1}, 12, v{E}")
        a(f"v_sub_u32 v{E+1}, v{T}, v{E+1}")
        a(f"v_mul_u32_u24 v{E}, 3072, v{E}")
        a(f"v_lshl_add_u32 v{VW+i}, v{E+1}, 4, v{E}")
    a(f"v_lshrrev_b32 v{E}, 3, v{LANE}")
    a(f"v_lshlrev_b32 v{E}, 10, v{E}")
    a(f"v_lshrrev_b32 v{E+1}, 4, v{LANE}")
    a(f"v_and_b32 v{E+2}, 7, v{LANE}")
    a(f"v_xor_b32 v{E+1}, v{E+1}, v{E+2}")
    for i in range(4):
        if i & 1:
            a(f"v_xor_b32 v{T}, 4, v{E+1}")
            a(f"v_lshl_add_u32 v{VX+i}, v{T}, 4, v{E}")
        else:
            a(f"v_lshl_add_u32 v{VX+i}, v{E+1}, 4, v{E}")
        if i: a(f"v_add_u32 v{VX+i}, {8192*i}, v{VX+i}")
    a("s_waitcnt lgkmcnt(0)")
    srd(a, 12, 4, 5, 2097152)
    srd(a, 16, 6, 7, 1572864)
    srd(a, 24, 8, 9, WS_USED)
    a(f"""
s_cmp_ge_u32 s2, 6
s_cbranch_scc1 {name}_nz
v_mov_b32 v{E}, 0
v_mov_b32 v{E+1}, 0
v_mov_b32 v{E+2}, 0
v_mov_b32 v{E+3}, 0
v_lshlrev_b32 v{T}, 4, v0
s_lshl_b32 s3, s2, 12
s_add_u32 s3, s3, {ST}
buffer_store_dwordx4 v[{E}:{E+3}], v{T}, s[24:27], s3 offen
""")
    a.label(f"{name}_nz")
    def dma_w(c):
        a(f"s_add_u32 s33, s29, {c*196608}")
        for i in range(3):
            a(f"s_add_u32 m0, s31, {c*12288 + i*1024}")
            a("s_nop 0")
            a(f"buffer_load_dwordx4 v{VW+i}, s[16:19], s33 offen lds")
    def dma_x(c):
        a(f"s_add_u32 s33, s28, {c*128}")
        for i in range(4):
            a(f"s_add_u32 m0, s30, {(c&3)*4096 + i*1024}")
            a("s_nop 0")
            a(f"buffer_load_dwordx4 v{VX+i}, s[12:15], s33 offen lds")
    for c in range(4):
        dma_w(c); dma_x(c)
    for c in range(4, 8):
        dma_w(c)
    a(f"v_and_b32 v{E}, 31, v{LANE}")
    a(f"v_lshrrev_b32 v{E+1}, 5, v{LANE}")
    a(f"v_bfe_u32 v{E+2}, v{LANE}, 1, 3")
    a(f"v_xor_b32 v{E+2}, v{E+2}, v{E+1}")
    a(f"v_lshlrev_b32 v{E+2}, 4, v{E+2}")
    a(f"v_lshl_add_u32 v{E+2}, v{E}, 7, v{E+2}")
    for s in range(4):
        a(f"v_xor_b32 v{XA+s}, {s<<5}, v{E+2}")
        a(f"v_add_u32 v{XA+s}, s30, v{XA+s}")
    a(f"v_lshlrev_b32 v{E+3}, 3, v{E+1}")
    a(f"v_bfe_u32 v{T}, v{LANE}, 2, 2")
    a(f"v_add_u32 v{E+3}, v{E+3}, v{T}")
    a(f"v_mul_u32_u24 v{E+3}, 192, v{E+3}")
    a(f"v_bfe_u32 v{T}, v{LANE}, 4, 1")
    a(f"v_lshl_add_u32 v{E+3}, v{T}, 5, v{E+3}")
    a(f"v_and_b32 v{T}, 3, v{LANE}")
    a(f"v_lshl_add_u32 v{WA}, v{T}, 3, v{E+3}")
    a(f"v_add_u32 v{WA+1}, 49152, v{WA}")
    a(f"v_mov_b32 v{ONES}, 0x3f803f80")
    for r in (S1, S1+1, S2, S2+1, CS, CS+1, CS+2):
        a(f"v_mov_b32 v{r}, 0")
    for r in range(ACC, ACC+48):
        a(f"v_mov_b32 v{r}, 0")
    a(f"""
s_cmp_ge_u32 s22, 11
s_cbranch_scc1 {name}_v3
s_cmp_eq_u32 s22, 10
s_cbranch_scc1 {name}_v1
""")
    vm = [33, 30, 27, 24, 12, 8, 4, 0]
    def reads(ks):
        c, s = ks >> 2, ks & 3
        bf = ks & 1
        a(f"ds_read_b128 {vr(XF+4*bf,4)}, v{XA+s} offset:{(c&3)*4096}")
        for b in range(3):
            for v in range(2):
                off = (16*ks + 4*v)*192 + 64*b
                base = WA
                if off >= 49152:
                    off -= 49152; base = WA+1
                a(f"ds_read_b64_tr_b16 {vr(WF+12*bf+4*b+2*v,2)}, v{base} offset:{off}")
    def variant(tag, orient):
        a.label(f"{name}_{tag}")
        for c in range(8):
            a(f"s_waitcnt vmcnt({vm[c]})")
            a("s_barrier")
            reads(4*c)
            for s in range(4):
                ks = 4*c + s
                bf = ks & 1
                if s < 3:
                    reads(ks+1)
                    a("s_waitcnt lgkmcnt(7)")
                else:
                    a("s_waitcnt lgkmcnt(0)")
                xf = XF + 4*bf
                dots = []
                for i in range(4):
                    dots.append(f"v_dot2_f32_bf16 v{S1+(i&1)}, v{xf+i}, v{ONES}, v{S1+(i&1)}")
                    dots.append(f"v_dot2_f32_bf16 v{S2+(i&1)}, v{xf+i}, v{xf+i}, v{S2+(i&1)}")
                for b in range(3):
                    wf = WF + 12*bf + 4*b
                    acc = vr(ACC+16*b, 16)
                    if orient[b] == 0:
                        a(f"v_mfma_f32_32x32x16_bf16 {acc}, {vr(wf,4)}, {vr(xf,4)}, {acc}")
                    else:
                        a(f"v_mfma_f32_32x32x16_bf16 {acc}, {vr(xf,4)}, {vr(wf,4)}, {acc}")
                    for d in dots[3*b:3*b+3]:
                        a(d)
                if s == 3 and c < 4:
                    dma_x(c+4)
                sk = a.newlabel(f"{name}_sk")
                a(f"s_cmp_lg_u32 s20, {s}")
                a(f"s_cbranch_scc1 {sk}")
                for i in range(4):
                    for b in range(3):
                        a(f"v_dot2_f32_bf16 v{CS+b}, v{WF+12*bf+4*b+i}, v{ONES}, v{CS+b}")
                a.label(sk)
        CSB = XB
        a(f"v_and_b32 v{E}, 31, v{LANE}")
        a(f"v_lshrrev_b32 v{E+1}, 5, v{LANE}")
        a(f"s_lshl_b32 s3, s20, 3")
        a(f"s_add_u32 s3, s3, {CSB}")
        a(f"v_lshlrev_b32 v{E+2}, 5, v{E}")
        a(f"v_lshl_add_u32 v{E+2}, v{E+1}, 2, v{E+2}")
        a(f"v_add_u32 v{E+2}, s3, v{E+2}")
        for b in range(3):
            a(f"ds_write_b32 v{E+2}, v{CS+b} offset:{b*1024}")
        a(f"v_add_f32 v{S1}, v{S1}, v{S1+1}")
        a(f"v_add_f32 v{S2}, v{S2}, v{S2+1}")
        a(f"v_mov_b32 v{S1+1}, v{S1}")
        a(f"v_mov_b32 v{S2+1}, v{S2}")
        a("s_nop 1")
        a(f"v_permlane32_swap_b32 v{S1}, v{S1+1}")
        a(f"v_permlane32_swap_b32 v{S2}, v{S2+1}")
        a("s_nop 1")
        a(f"v_add_f32 v{S1}, v{S1}, v{S1+1}")
        a(f"v_add_f32 v{S2}, v{S2}, v{S2+1}")
        a(f"v_mul_f32 v{S1}, {hex(f32bits(1/512))}, v{S1}")
        a(f"v_mul_f32 v{S2}, {hex(f32bits(1/512))}, v{S2}")
        a(f"v_fma_f32 v{S2}, -v{S1}, v{S1}, v{S2}")
        a(f"v_max_f32 v{S2}, 0, v{S2}")
        bf16r(a, S1, S1)
        bf16r(a, S2, S2)
        a(f"v_add_f32 v{S2}, {hex(f32bits(1e-5))}, v{S2}")
        bf16r(a, S2, S2)
        a(f"v_sqrt_f32 v{S2}, v{S2}")
        a("s_nop 0")
        bf16r(a, S2, S2)
        a(f"v_rcp_f32 v{S2}, v{S2}")
        MBV, RSV = S1, S2
        a("s_waitcnt lgkmcnt(0)")
        a("s_barrier")
        P = 4096
        a(f"v_lshlrev_b32 v{E+2}, 5, v{LANE}")
        a(f"v_lshlrev_b32 v{E+3}, 5, v{E}")
        a(f"v_add_u32 v{E+2}, {CSB}, v{E+2}")
        a(f"v_add_u32 v{E+3}, {CSB+2048}, v{E+3}")
        a(f"ds_read_b128 {vr(E+4,4)}, v{E+2}")
        a(f"ds_read_b128 {vr(E+8,4)}, v{E+2} offset:16")
        a(f"ds_read_b128 {vr(E+12,4)}, v{E+3}")
        a(f"ds_read_b128 {vr(E+16,4)}, v{E+3} offset:16")
        a(f"v_lshlrev_b32 v{E+2}, 2, v{LANE}")
        a(f"v_add_u32 v{E+2}, s30, v{E+2}")
        a(f"v_lshlrev_b32 v{E+3}, 2, v{E}")
        a(f"v_add_u32 v{E+3}, s30, v{E+3}")
        if any(orient):
            a(f"ds_write_b32 v{E+3}, v{MBV} offset:{P+512}")
            a(f"ds_write_b32 v{E+3}, v{RSV} offset:{P+640}")
        a("s_waitcnt lgkmcnt(0)")
        for base in (E+4, E+12):
            a(f"v_add_f32 v{base}, v{base}, v{base+1}")
            a(f"v_add_f32 v{base+2}, v{base+2}, v{base+3}")
            a(f"v_add_f32 v{base+4}, v{base+4}, v{base+5}")
            a(f"v_add_f32 v{base+6}, v{base+6}, v{base+7}")
            a(f"v_add_f32 v{base}, v{base}, v{base+2}")
            a(f"v_add_f32 v{base+4}, v{base+4}, v{base+6}")
            a(f"v_add_f32 v{base}, v{base}, v{base+4}")
        a(f"ds_write_b32 v{E+2}, v{E+4} offset:{P}")
        a(f"ds_write_b32 v{E+3}, v{E+12} offset:{P+256}")
        a(f"v_lshlrev_b32 v{E+2}, 4, v{E+1}")
        a(f"v_add_u32 v{E+2}, s30, v{E+2}")
        a(f"v_lshlrev_b32 v{T}, 4, v{LANE}")
        a("s_waitcnt lgkmcnt(0)")
        R = E + 4
        if any(orient):
            TM, TR = E + 20, E + 36
            for g in range(4):
                a(f"ds_read_b128 {vr(TM+4*g,4)}, v{E+2} offset:{P+512+32*g}")
                a(f"ds_read_b128 {vr(TR+4*g,4)}, v{E+2} offset:{P+640+32*g}")
            VO = E + 52
            a(f"v_bfe_u32 v{VO}, v{LANE}, 4, 1")
            a(f"v_lshlrev_b32 v{VO}, 17, v{VO}")
            a(f"v_lshl_add_u32 v{VO}, v{E+1}, 8, v{VO}")
            a(f"v_and_b32 v{VO+1}, 15, v{LANE}")
            a(f"v_lshl_add_u32 v{VO}, v{VO+1}, 4, v{VO}")
        for b in range(3):
            acc = ACC + 16*b
            a(f"s_mul_i32 s34, s22, 3")
            a(f"s_add_u32 s34, s34, {b}")
            a(f"s_and_b32 s35, s34, 15")
            a(f"s_lshl_b32 s35, s35, 7")
            a(f"s_add_u32 s35, s35, s23")
            if orient[b] == 0:
                for g in range(4):
                    a(f"ds_read_b128 {vr(R+4*g,4)}, v{E+2} offset:{P+128*b+32*g}")
                a(f"s_lshl_b32 s36, s35, 10")
                a(f"s_lshl_b32 s37, s35, 11")
                a(f"s_add_u32 s37, s37, {KV}")
                a(f"s_cmp_lt_u32 s34, 16")
                a(f"s_cselect_b32 s36, s36, s37")
                a(f"s_cselect_b32 s38, 1, 2")
                a(f"s_cselect_b32 s39, {hex(f32bits(QSCALE))}, 1.0")
                a(f"s_lshl_b32 s38, s38, 16")
                a(f"s_add_u32 s37, s36, s38")
                a(f"v_mul_f32 v{E+3}, s39, v{RSV}")
                a("s_waitcnt lgkmcnt(0)")
                for r in range(16):
                    a(f"v_fma_f32 v{acc+r}, -v{MBV}, v{R+r}, v{acc+r}")
                for r in range(16):
                    a(f"v_mul_f32 v{acc+r}, v{E+3}, v{acc+r}")
                for i in range(8):
                    a(f"v_cvt_pk_bf16_f32 v{acc+i}, v{acc+2*i}, v{acc+2*i+1}")
                a(f"buffer_store_dwordx4 {vr(acc,4)}, v{T}, s[24:27], s36 offen")
                a(f"buffer_store_dwordx4 {vr(acc+4,4)}, v{T}, s[24:27], s37 offen")
            else:
                a(f"v_lshlrev_b32 v{R+1}, 2, v{E}")
                a(f"v_add_u32 v{R+1}, s30, v{R+1}")
                a(f"ds_read_b32 v{R}, v{R+1} offset:{P+128*b}")
                a(f"s_lshl_b32 s37, s35, 11")
                a(f"s_add_u32 s37, s37, {KV+1024}")
                a("s_waitcnt lgkmcnt(0)")
                for r in range(16):
                    a(f"v_fma_f32 v{acc+r}, -v{TM+r}, v{R}, v{acc+r}")
                for r in range(16):
                    a(f"v_mul_f32 v{acc+r}, v{TR+r}, v{acc+r}")
                for i in range(8):
                    a(f"v_cvt_pk_bf16_f32 v{acc+i}, v{acc+2*i}, v{acc+2*i+1}")
                a(f"buffer_store_dwordx4 {vr(acc,4)}, v{VO}, s[24:27], s37 offen")
                a(f"buffer_store_dwordx4 {vr(acc+4,4)}, v{VO}, s[24:27], s37 offen offset:512")
        a("s_endpgm")
    variant("v0", [0, 0, 0])
    variant("v1", [0, 0, 1])
    variant("v3", [1, 1, 1])
    a.label(f"{name}_end")
    a("s_endpgm")
    return 160
```

```python
from asmlib import *
from layout import *
from k1 import f32bits

def gen_k2(a, name="attn_kernel"):
    kernel_begin(a, name)
    SA = 0; SB = 16; O = 32; C = 48; EX = 64; P = 80; KF = 88; Q = 96; V0 = 100; V1 = 108
    LANE = 116; KA = 117; VA = 118; T = 119; T2 = 120; DV = 121
    S = [SA, SB]
    a(f"""
s_cmp_ge_u32 s2, 256
s_cbranch_scc1 {name}_end
s_load_dwordx2 s[8:9], s[0:1], 80
v_lshrrev_b32 v{T}, 6, v0
v_and_b32 v{LANE}, 63, v0
s_and_b32 s10, s2, 7
v_readfirstlane_b32 s20, v{T}
s_lshr_b32 s11, s2, 6
s_lshl_b32 s11, s11, 3
s_add_u32 s21, s10, s11           ; head
s_bfe_u32 s22, s2, 0x30003        ; j = (id>>3)&7
s_lshl_b32 s23, s22, 3
s_add_u32 s23, s23, s20           ; q tile t = 8j + w
v_lshlrev_b32 v{DV}, 4, v{LANE}   ; lane*16
s_lshl_b32 s28, s21, 6
s_add_u32 s28, s28, s23
s_lshl_b32 s28, s28, 10
s_lshl_b32 s29, s21, 17
s_lshl_b32 s3, s20, 10
s_add_u32 s29, s29, s3
s_add_u32 s29, s29, {KV}
s_lshl_b32 s30, s20, 10
s_waitcnt lgkmcnt(0)
""")
    srd(a, 24, 8, 9, WS_USED)
    a(f"buffer_load_dwordx4 {vr(Q,4)}, v{DV}, s[24:27], s28 offen")
    for i in range(16):
        a(f"s_add_u32 m0, s30, {i*8192}")
        a(f"s_add_u32 s33, s29, {i*8192}")
        a(f"buffer_load_dwordx4 v{DV}, s[24:27], s33 offen lds")
    a(f"v_mov_b32 v{KA}, v{DV}")
    a(f"v_lshrrev_b32 v{T}, 5, v{LANE}")
    a(f"v_and_b32 v{T2}, 15, v{LANE}")
    a(f"v_lshlrev_b32 v{T2}, 4, v{T2}")
    a(f"v_lshl_add_u32 v{VA}, v{T}, 8, v{T2}")
    for r in range(V0, V0+16):
        a(f"v_mov_b32 v{r}, 0x3f803f80")
    a(f"s_mov_b32 s40, 0x0000ffff")
    a(f"s_mov_b32 s41, 0x0000ffff")
    a(f"s_mov_b32 s44, 0")
    a("s_waitcnt vmcnt(12)")
    a("s_barrier")
    a(f"ds_read_b128 {vr(KF,4)}, v{KA}")
    a("s_waitcnt lgkmcnt(0)")
    a(f"v_mfma_f32_32x32x16_bf16 {vr(SA,16)}, {vr(KF,4)}, {vr(Q,4)}, 0")
    a("s_nop 15")
    def max16(dst, src, init=None):
        if init is None:
            a(f"v_max3_f32 v{dst}, v{src}, v{src+1}, v{src+2}")
            a(f"v_max_f32 v{dst}, v{dst}, v{src+3}")
            st = 4
        else:
            st = 0
        for i in range(st, 16, 2):
            a(f"v_max3_f32 v{dst}, v{dst}, v{src+i}, v{src+i+1}")
    max16(T, SA)
    a.label(f"{name}_setmax")
    a(f"v_mov_b32 v{T2}, v{T}")
    a("s_nop 1")
    a(f"v_permlane32_swap_b32 v{T}, v{T2}")
    a("s_nop 1")
    a(f"v_max_f32 v{T}, v{T}, v{T2}")
    for r in range(16):
        a(f"v_sub_f32 v{C+r}, 0, v{T}")
    for r in range(16):
        a(f"v_mov_b32 v{O+r}, 0")
    for r in range(4):
        a(f"v_mov_b32 v{P+4+r}, 0")
    def rdK(t, buf):
        a(f"ds_read_b128 {vr(KF+4*buf,4)}, v{KA} offset:{t*2048}")
    def rdV(t, buf):
        a("s_mov_b64 exec, s[40:41]")
        a(f"ds_read_b128 {vr(V0+4*buf,4)}, v{VA} offset:{t*2048+1024}")
        a(f"ds_read_b128 {vr(V1+4*buf,4)}, v{VA} offset:{t*2048+1536}")
        a("s_mov_b64 exec, -1")
    rdK(0, 0)
    rdK(1, 1)
    rdV(0, 0)
    a("s_waitcnt lgkmcnt(0)")
    a(f"v_mfma_f32_32x32x16_bf16 {vr(SA,16)}, {vr(KF,4)}, {vr(Q,4)}, {vr(C,16)}")
    a("s_mov_b32 s31, 0")
    a("s_nop 7")
    a.raw(".p2align 6")
    a.label(f"{name}_loop")
    a(f"""
s_cmp_lg_u32 s31, 1
s_cbranch_scc1 {name}_nobar
s_cmp_lg_u32 s44, 0
s_cbranch_scc1 {name}_nobar
s_waitcnt vmcnt(0)
s_barrier
""")
    a.label(f"{name}_nobar")
    NT = 8
    for t in range(NT):
        cur = t & 1; nxt = cur ^ 1
        s0 = S[cur]; s1 = S[nxt]
        ex = lambda i: a(f"v_exp_f32 v{EX+i}, v{s0+i}")
        pk = lambda j: a(f"v_cvt_pk_bf16_f32 v{P+j}, v{EX+2*j}, v{EX+2*j+1}")
        a("s_waitcnt lgkmcnt(0)")
        a(f"v_mfma_f32_32x32x16_bf16 {vr(s1,16)}, {vr(KF+4*nxt,4)}, {vr(Q,4)}, {vr(C,16)}")
        rdK(t+2, cur)
        for i in range(0, 3): ex(i)
        a(f"v_mfma_f32_32x32x16_bf16 {vr(O,16)}, {vr(V1+4*nxt,4)}, {vr(P+4,4)}, {vr(O,16)}")
        rdV(t+1, nxt)
        for i in range(3, 9): ex(i)
        for j in range(4): pk(j)
        for i in range(9, 11): ex(i)
        a(f"v_mfma_f32_32x32x16_bf16 {vr(O,16)}, {vr(V0+4*cur,4)}, {vr(P,4)}, {vr(O,16)}")
        for i in range(11, 16): ex(i)
        for j in range(4, 8): pk(j)
    a(f"v_add_u32 v{KA}, {NT*2048}, v{KA}")
    a(f"v_add_u32 v{VA}, {NT*2048}, v{VA}")
    a(f"""
s_add_u32 s31, s31, 1
s_cmp_lt_u32 s31, {64//NT}
s_cbranch_scc1 {name}_loop
""")
    a(f"v_mfma_f32_32x32x16_bf16 {vr(O,16)}, {vr(V1+4,4)}, {vr(P+4,4)}, {vr(O,16)}")
    a(f"v_subrev_u32 v{KA}, {131072}, v{KA}")
    a(f"v_subrev_u32 v{VA}, {131072}, v{VA}")
    a("s_waitcnt lgkmcnt(0)")
    a("s_nop 12")
    a(f"v_mov_b32 v{T}, 0x4f800000")
    a(f"v_cmp_le_f32 vcc, v{O+8}, v{T}")
    a(f"s_cmp_eq_u64 vcc, exec")
    a(f"s_cbranch_scc1 {name}_fin")
    a(f"s_cmp_lg_u32 s44, 0")
    a(f"s_cbranch_scc1 {name}_fin")
    a(f"s_mov_b32 s44, 1")
    a(f"s_mov_b32 s31, 0")
    a(f"v_mov_b32 v{T}, 0xff800000")
    a(f"v_mov_b32 v{T2}, v{KA}")
    a.label(f"{name}_mx")
    a(f"ds_read_b128 {vr(KF,4)}, v{T2}")
    a("s_waitcnt lgkmcnt(0)")
    a(f"v_mfma_f32_32x32x16_bf16 {vr(SA,16)}, {vr(KF,4)}, {vr(Q,4)}, 0")
    a(f"v_add_u32 v{T2}, 2048, v{T2}")
    a("s_nop 15")
    max16(T, SA, init=True)
    a(f"""
s_add_u32 s31, s31, 1
s_cmp_lt_u32 s31, 64
s_cbranch_scc1 {name}_mx
s_branch {name}_setmax
""")
    a.label(f"{name}_fin")
    a(f"v_rcp_f32 v{T}, v{O+8}")
    a(f"s_lshl_b32 s28, s23, 5")
    a(f"s_add_u32 s28, s28, s21")
    a(f"s_lshl_b32 s28, s28, 10")
    a(f"s_add_u32 s28, s28, {OF}")
    for r in range(8):
        a(f"v_mul_f32 v{O+r}, v{T}, v{O+r}")
    for i in range(4):
        a(f"v_cvt_pk_bf16_f32 v{O+i}, v{O+2*i}, v{O+2*i+1}")
    a(f"buffer_store_dwordx4 {vr(O,4)}, v{DV}, s[24:27], s28 offen")
    a.label(f"{name}_end")
    a("s_endpgm")
    return 128
```

```python
from asmlib import *
from layout import *
from k1 import f32bits

def gen_k3(a, name="oproj_kernel"):
    kernel_begin(a, name)
    LANE = 1; DV = 2; WV = 3; OA = 4; WA = 5; T = 6; T2 = 7; HALF = 8; R31 = 9; XO = 10; ONES = 11
    XR = 12
    WR = 20
    OFr = 28
    WFr = 36
    ACC = 44
    E = 60
    a(f"""
s_cmp_ge_u32 s2, 256
s_cbranch_scc1 {name}_end
s_load_dwordx2 s[4:5], s[0:1], 0
s_load_dwordx2 s[6:7], s[0:1], 16
s_load_dwordx2 s[10:11], s[0:1], 32
s_load_dwordx2 s[8:9], s[0:1], 80
v_lshrrev_b32 v{T}, 6, v0
v_and_b32 v{LANE}, 63, v0
s_and_b32 s3, s2, 7
v_readfirstlane_b32 s20, v{T}
s_lshr_b32 s33, s2, 3
s_lshl_b32 s21, s3, 2
s_and_b32 s3, s33, 3
s_add_u32 s21, s21, s3            ; mt (0..31)
s_lshr_b32 s22, s33, 2            ; nt (0..7)
s_lshr_b32 s34, s20, 1            ; wr
s_and_b32 s35, s20, 1             ; wc
v_lshlrev_b32 v{DV}, 4, v{LANE}
v_lshrrev_b32 v{HALF}, 5, v{LANE}
v_and_b32 v{R31}, 31, v{LANE}
v_lshrrev_b32 v{T}, 3, v{LANE}
v_lshlrev_b32 v{T}, 10, v{T}
v_bfe_u32 v{T2}, v{LANE}, 4, 1
v_lshlrev_b32 v{T2}, 2, v{T2}
v_and_b32 v{WV}, 7, v{LANE}
v_xor_b32 v{WV}, v{WV}, v{T2}
v_lshl_add_u32 v{WV}, v{WV}, 4, v{T}
v_lshlrev_b32 v{XO}, 10, v{R31}
v_lshl_add_u32 v{XO}, v{HALF}, 4, v{XO}
s_lshl_b32 s36, s21, 1
s_add_u32 s36, s36, s34
s_lshl_b32 s37, s36, 15
s_lshl_b32 s38, s22, 1
s_add_u32 s38, s38, s35
s_lshl_b32 s39, s38, 6
s_add_u32 s37, s37, s39           ; x/h soffset
v_lshlrev_b32 v{T}, 3, v{HALF}
s_waitcnt lgkmcnt(0)
""")
    srd(a, 12, 4, 5, 2097152)
    srd(a, 16, 6, 7, 524288)
    srd(a, 24, 8, 9, WS_USED)
    srd(a, 28, 10, 11, 1024)
    a(f"buffer_load_dwordx4 {vr(XR,4)}, v{XO}, s[12:15], s37 offen")
    a(f"buffer_load_dwordx4 {vr(XR+4,4)}, v{XO}, s[12:15], s37 offen offset:32")
    for g in range(4):
        a(f"buffer_load_dwordx2 {vr(WR+2*g,2)}, v{T}, s[28:31], s39 offen offset:{16*g}")
    a(f"s_lshl_b32 s40, s21, 16")
    a(f"s_add_u32 s40, s40, {OF}")
    a(f"s_lshl_b32 s41, s34, 15")
    a(f"s_lshl_b32 s3, s35, 12")
    a(f"s_add_u32 s41, s41, s3")
    a(f"s_add_u32 s40, s40, s41")
    a(f"s_lshl_b32 s42, s20, 12")
    a(f"s_add_u32 s42, s42, 65536")
    a(f"s_lshl_b32 s43, s20, 15")
    a(f"s_lshl_b32 s3, s22, 7")
    a(f"s_add_u32 s43, s43, s3")
    for c in range(4):
        for i in range(4):
            a(f"s_add_u32 m0, s41, {c*8192 + i*1024}")
            a(f"s_add_u32 s33, s40, {c*8192 + i*1024}")
            a(f"buffer_load_dwordx4 v{DV}, s[24:27], s33 offen lds")
        for i in range(4):
            a(f"s_add_u32 m0, s42, {c*16384 + i*1024}")
            a(f"s_add_u32 s33, s43, {c*131072 + i*8192}")
            a(f"buffer_load_dwordx4 v{WV}, s[16:19], s33 offen lds")
    a(f"s_lshl_b32 s3, s34, 15")
    a(f"v_add_u32 v{OA}, s3, v{DV}")
    a(f"v_bfe_u32 v{T}, v{LANE}, 2, 2")
    a(f"v_lshl_add_u32 v{T2}, v{HALF}, 2, v{T}")
    a(f"v_lshlrev_b32 v{WA}, 7, v{T2}")
    a(f"v_bfe_u32 v{T}, v{LANE}, 3, 1")
    a(f"v_lshlrev_b32 v{T}, 6, v{T}")
    a(f"s_lshl_b32 s3, s35, 6")
    a(f"v_xor_b32 v{T}, s3, v{T}")
    a(f"v_add_u32 v{WA}, v{WA}, v{T}")
    a(f"v_bfe_u32 v{T}, v{LANE}, 4, 1")
    a(f"v_lshl_add_u32 v{WA}, v{T}, 5, v{WA}")
    a(f"v_and_b32 v{T}, 3, v{LANE}")
    a(f"v_lshl_add_u32 v{WA}, v{T}, 3, v{WA}")
    a(f"v_add_u32 v{WA}, 65536, v{WA}")
    a(f"v_mov_b32 v{ONES}, 0x3f803f80")
    for r in range(16):
        a(f"v_mov_b32 v{ACC+r}, 0")
    def reads(hh):
        bf = hh & 1
        a(f"ds_read_b128 {vr(OFr+4*bf,4)}, v{OA} offset:{hh*1024}")
        a(f"ds_read_b64_tr_b16 {vr(WFr+4*bf,2)}, v{WA} offset:{hh*2048}")
        a(f"ds_read_b64_tr_b16 {vr(WFr+4*bf+2,2)}, v{WA} offset:{hh*2048+1024}")
    for c in range(4):
        a(f"s_waitcnt vmcnt({24-8*c})")
        a("s_barrier")
        reads(8*c)
        for s in range(8):
            hh = 8*c + s
            bf = hh & 1
            if s < 7:
                reads(hh+1)
                a("s_waitcnt lgkmcnt(3)")
            else:
                a("s_waitcnt lgkmcnt(0)")
            a(f"v_mfma_f32_32x32x16_bf16 {vr(ACC,16)}, {vr(WFr+4*bf,4)}, {vr(OFr+4*bf,4)}, {vr(ACC,16)}")
    for q in range(2):
        a(f"v_permlane32_swap_b32 v{XR+4*q}, v{XR+4*q+2}")
        a(f"v_permlane32_swap_b32 v{XR+4*q+1}, v{XR+4*q+3}")
    S1, S2, SW = E, E+1, E+2
    a(f"v_mov_b32 v{S1}, 0")
    a(f"v_mov_b32 v{S2}, 0")
    a(f"v_mov_b32 v{SW}, 0")
    a(f"s_mov_b32 s44, 0xffff0000")
    a("s_nop 7")
    HP = E + 4
    for i in range(8):
        a(f"v_cvt_pk_bf16_f32 v{T}, v{ACC+2*i}, v{ACC+2*i+1}")
        a(f"v_lshlrev_b32 v{ACC+2*i}, 16, v{T}")
        a(f"v_and_b32 v{ACC+2*i+1}, s44, v{T}")
        a(f"v_lshlrev_b32 v{T}, 16, v{XR+i}")
        a(f"v_and_b32 v{T2}, s44, v{XR+i}")
        a(f"v_add_f32 v{ACC+2*i}, v{ACC+2*i}, v{T}")
        a(f"v_add_f32 v{ACC+2*i+1}, v{ACC+2*i+1}, v{T2}")
        a(f"v_cvt_pk_bf16_f32 v{HP+i}, v{ACC+2*i}, v{ACC+2*i+1}")
    for i in range(8):
        a(f"v_dot2_f32_bf16 v{S1}, v{HP+i}, v{ONES}, v{S1}")
        a(f"v_dot2_f32_bf16 v{S2}, v{HP+i}, v{HP+i}, v{S2}")
        a(f"v_dot2_f32_bf16 v{SW}, v{HP+i}, v{WR+i}, v{SW}")
    for q in range(2):
        a(f"v_permlane32_swap_b32 v{HP+4*q}, v{HP+4*q+2}")
        a(f"v_permlane32_swap_b32 v{HP+4*q+1}, v{HP+4*q+3}")
    a(f"s_add_u32 s33, s37, {HB}")
    a("s_nop 0")
    a(f"buffer_store_dwordx4 {vr(HP,4)}, v{XO}, s[24:27], s33 offen")
    a(f"buffer_store_dwordx4 {vr(HP+4,4)}, v{XO}, s[24:27], s33 offen offset:32")
    a(f"v_mov_b32 v{T}, v{SW}")
    a("s_nop 1")
    a(f"v_permlane32_swap_b32 v{S1}, v{S2}")
    a(f"v_permlane32_swap_b32 v{SW}, v{T}")
    a("s_nop 1")
    a(f"v_add_f32 v{S1}, v{S1}, v{S2}")
    a(f"v_add_f32 v{SW}, v{SW}, v{T}")
    a(f"v_lshlrev_b32 v{T}, 2, v{R31}")
    a(f"v_lshl_add_u32 v{T2}, v{HALF}, 13, v{T}")
    a(f"s_lshl_b32 s33, s36, 7")
    a(f"s_add_u32 s33, s33, {ST}")
    a(f"s_add_u32 s45, s33, 16384")
    a(f"buffer_atomic_add_f32 v{S1}, v{T2}, s[24:27], s33 offen")
    a(f"s_mov_b32 exec_hi, 0")
    a(f"buffer_atomic_add_f32 v{SW}, v{T}, s[24:27], s45 offen")
    a.label(f"{name}_end")
    a("s_endpgm")
    return 80
```

```python
from asmlib import *
from layout import *
from k1 import f32bits, bf16r

DPPS = ["quad_perm:[1,0,3,2]", "quad_perm:[2,3,0,1]", "row_half_mirror", "row_mirror"]
def wave_red(a, op, regs, tmps):
    n = len(regs)
    pad = max(0, 3 - n)
    def nop():
        if pad: a(f"s_nop {pad-1}")
    a("s_nop 1")
    for d in DPPS:
        for r in regs:
            a(f"{op}_dpp v{r}, v{r}, v{r} {d} row_mask:0xf bank_mask:0xf")
        nop()
    for sw in ("v_permlane16_swap_b32", "v_permlane32_swap_b32"):
        for r, t in zip(regs, tmps):
            a(f"v_mov_b32 v{t}, v{r}")
        a("s_nop 1") if n < 3 else None
        for r, t in zip(regs, tmps):
            a(f"{sw} v{r}, v{t}")
        a("s_nop 1") if n < 3 else None
        for r, t in zip(regs, tmps):
            a(f"{op} v{r}, v{r}, v{t}")
        nop()

def ln_rows(a, rows, F, SM, TM, smask):
    n = len(rows)
    for k, R in enumerate(rows):
        for i in range(4):
            a(f"v_lshlrev_b32 v{F+8*k+2*i}, 16, v{R+i}")
            a(f"v_and_b32 v{F+8*k+2*i+1}, s{smask}, v{R+i}")
    for k in range(n):
        f = F + 8*k
        a(f"v_add_f32 v{SM+k}, v{f}, v{f+1}")
        a(f"v_add_f32 v{TM+k}, v{f+2}, v{f+3}")
        a(f"v_add_f32 v{SM+k}, v{SM+k}, v{f+4}")
        a(f"v_add_f32 v{TM+k}, v{TM+k}, v{f+5}")
        a(f"v_add_f32 v{SM+k}, v{SM+k}, v{f+6}")
        a(f"v_add_f32 v{TM+k}, v{TM+k}, v{f+7}")
        a(f"v_add_f32 v{SM+k}, v{SM+k}, v{TM+k}")
    wave_red(a, "v_add_f32", [SM+k for k in range(n)], [TM+k for k in range(n)])
    V = SM + n
    for k in range(n):
        f = F + 8*k
        a(f"v_mul_f32 v{SM+k}, {hex(f32bits(1/512))}, v{SM+k}")
        a(f"v_sub_f32 v{TM+k}, v{f}, v{SM+k}")
        a(f"v_mul_f32 v{V+k}, v{TM+k}, v{TM+k}")
        for i in range(1, 8):
            a(f"v_sub_f32 v{TM+k}, v{f+i}, v{SM+k}")
            a(f"v_fmac_f32 v{V+k}, v{TM+k}, v{TM+k}")
    wave_red(a, "v_add_f32", [V+k for k in range(n)], [TM+k for k in range(n)])
    for k in range(n):
        a(f"v_mul_f32 v{V+k}, {hex(f32bits(1/512))}, v{V+k}")
    for k in range(n):
        bf16r(a, SM+k, SM+k)
        bf16r(a, V+k, V+k)
        a(f"v_add_f32 v{V+k}, {hex(f32bits(1e-5))}, v{V+k}")
        bf16r(a, V+k, V+k)
        a(f"v_sqrt_f32 v{V+k}, v{V+k}")
        a("s_nop 0")
        bf16r(a, V+k, V+k)
        a(f"v_rcp_f32 v{V+k}, v{V+k}")
    for k in range(n):
        f = F + 8*k
        for i in range(4):
            a(f"v_sub_f32 v{f+2*i}, v{f+2*i}, v{SM+k}")
            a(f"v_sub_f32 v{f+2*i+1}, v{f+2*i+1}, v{SM+k}")
            a(f"v_cvt_pk_bf16_f32 v{TM+k}, v{f+2*i}, v{f+2*i+1}")
            a(f"v_lshlrev_b32 v{f+2*i}, 16, v{TM+k}")
            a(f"v_and_b32 v{f+2*i+1}, s{smask}, v{TM+k}")
            a(f"v_mul_f32 v{f+2*i}, v{f+2*i}, v{V+k}")
            a(f"v_mul_f32 v{f+2*i+1}, v{f+2*i+1}, v{V+k}")

NFFN = 43
NOUT = 128
SORT8 = [(0,1),(2,3),(4,5),(6,7),(0,2),(1,3),(4,6),(5,7),(1,2),(5,6),(0,4),(3,7),(1,5),(2,6),(1,4),(3,6),(2,4),(3,5),(3,4)]

def gen_k4(a, name="ffn1_kernel"):
    kernel_begin(a, name)
    LANE = 1; DV = 2; T = 3; T2 = 4
    a(f"""
s_cmp_ge_u32 s2, {NFFN+NOUT}
s_cbranch_scc1 {name}_end
s_load_dwordx2 s[4:5], s[0:1], 32
s_load_dwordx4 s[48:51], s[0:1], 40
s_load_dwordx4 s[52:55], s[0:1], 56
s_load_dwordx2 s[8:9], s[0:1], 80
v_lshrrev_b32 v{T}, 6, v0
v_and_b32 v{LANE}, 63, v0
s_mov_b32 s44, 0xffff0000
v_readfirstlane_b32 s20, v{T}
v_lshlrev_b32 v{DV}, 4, v{LANE}
s_cmp_lt_u32 s2, {NFFN}
s_cbranch_scc1 {name}_ffn
""")
    R = 8; F = 24; SM = 56; TM = 64
    a("s_waitcnt lgkmcnt(0)")
    srd(a, 24, 8, 9, WS_USED)
    srd(a, 12, 54, 55, 2097152)
    a(f"s_sub_u32 s3, s2, {NFFN}")
    a(f"s_lshl_b32 s3, s3, 2")
    a(f"s_add_u32 s3, s3, s20")
    a(f"s_lshl_b32 s21, s3, 12")
    a(f"s_add_u32 s22, s21, {HB}")
    for k in range(4):
        a(f"buffer_load_dwordx4 {vr(R+4*k,4)}, v{DV}, s[24:27], s22 offen offset:{1024*k}")
    a("s_waitcnt vmcnt(0)")
    ln_rows(a, [R+4*k for k in range(4)], F, SM, TM, 44)
    for k in range(4):
        f = F + 8*k
        for i in range(4):
            a(f"v_cvt_pk_bf16_f32 v{T}, v{f+2*i}, v{f+2*i+1}")
            a(f"v_lshlrev_b32 v{f+2*i}, 16, v{T}")
            a(f"v_and_b32 v{f+2*i+1}, s44, v{T}")
            a(f"v_lshlrev_b32 v{T}, 16, v{R+4*k+i}")
            a(f"v_and_b32 v{T2}, s44, v{R+4*k+i}")
            a(f"v_add_f32 v{f+2*i}, v{f+2*i}, v{T}")
            a(f"v_add_f32 v{f+2*i+1}, v{f+2*i+1}, v{T2}")
            a(f"v_cvt_pk_bf16_f32 v{R+4*k+i}, v{f+2*i}, v{f+2*i+1}")
        a(f"buffer_store_dwordx4 {vr(R+4*k,4)}, v{DV}, s[12:15], s21 offen offset:{1024*k}")
    a("s_endpgm")
    a.label(f"{name}_ffn")
    ST1 = 8; ST2 = 16; STW = 24; WRV = 32; GV = 36; K = 40; W8 = 48; WS_ = 49; TT = 50
    XS = 98304; CAND = XS + 8*1040 + 64; UX = CAND + 256; ACT = UX + 2048
    a(f"v_lshrrev_b32 v{T}, 2, v{LANE}")
    a(f"v_mul_u32_u24 v{T}, 2752, v{T}")
    a(f"v_and_b32 v{T2}, 3, v{LANE}")
    a(f"v_lshl_add_u32 v{GV}, v{T2}, 4, v{T}")
    a(f"v_lshlrev_b32 v{T}, 5, v0")
    a("s_waitcnt lgkmcnt(0)")
    srd(a, 24, 8, 9, WS_USED)
    srd(a, 28, 4, 5, 1024)
    srd(a, 12, 48, 49, 512*1376*2)
    srd(a, 16, 50, 51, 512*1376*2)
    srd(a, 56, 52, 53, 512*1376*2)
    a(f"s_mov_b32 s33, {ST}")
    a(f"s_mov_b32 s34, {ST+8192}")
    a(f"s_mov_b32 s35, {ST+16384}")
    for base, so in ((ST1, 33), (ST2, 34), (STW, 35)):
        a(f"buffer_load_dwordx4 {vr(base,4)}, v{T}, s[24:27], s{so} offen")
        a(f"buffer_load_dwordx4 {vr(base+4,4)}, v{T}, s[24:27], s{so} offen offset:16")
    a(f"buffer_load_dwordx4 {vr(WRV,4)}, v{DV}, s[28:31], 0 offen")
    a(f"s_lshl_b32 s36, s2, 6")
    a(f"s_mul_i32 s3, s20, {8*16*2752}")
    a(f"s_add_u32 s36, s36, s3")
    a(f"s_lshl_b32 s37, s20, 13")
    for i in range(8):
        a(f"s_add_u32 m0, s37, {i*1024}")
        a(f"s_add_u32 s33, s36, {i*16*2752}")
        a(f"buffer_load_dwordx4 v{GV}, s[12:15], s33 offen lds")
    for i in range(8):
        a(f"s_add_u32 m0, s37, {32768 + i*1024}")
        a(f"s_add_u32 s33, s36, {i*16*2752}")
        a(f"buffer_load_dwordx4 v{GV}, s[16:19], s33 offen lds")
    a(f"s_lshl_b32 s38, s2, 15")
    a(f"s_add_u32 s38, s38, s37")
    for i in range(8):
        a(f"s_add_u32 m0, s37, {65536 + i*1024}")
        a(f"s_add_u32 s33, s38, {i*1024}")
        a(f"buffer_load_dwordx4 v{DV}, s[56:59], s33 offen lds")
    a(f"v_mov_b32 v{TT}, 0x3f803f80")
    a(f"v_mov_b32 v{WS_}, 0")
    a("s_waitcnt vmcnt(24)")
    for i in range(4):
        a(f"v_dot2_f32_bf16 v{WS_}, v{WRV+i}, v{TT}, v{WS_}")
    a("s_nop 2")
    wave_red(a, "v_add_f32", [WS_], [TT])
    a(f"v_lshlrev_b32 v{T2}, 3, v0")
    a(f"v_sub_u32 v{T2}, 2047, v{T2}")
    a(f"s_mov_b32 s45, 0xfffff800")
    a(f"s_mov_b32 s46, 0x80000000")
    inv = hex(f32bits(1/512))
    for i in range(8):
        a(f"v_mul_f32 v{ST1+i}, {inv}, v{ST1+i}")
        a(f"v_mul_f32 v{ST2+i}, {inv}, v{ST2+i}")
        a(f"v_fma_f32 v{ST2+i}, -v{ST1+i}, v{ST1+i}, v{ST2+i}")
        a(f"v_max_f32 v{ST2+i}, 0, v{ST2+i}")
        bf16r(a, ST2+i, ST2+i)
        a(f"v_add_f32 v{ST2+i}, {hex(f32bits(1e-5))}, v{ST2+i}")
        bf16r(a, ST2+i, ST2+i)
        a(f"v_sqrt_f32 v{ST2+i}, v{ST2+i}")
        a(f"v_fma_f32 v{STW+i}, -v{ST1+i}, v{WS_}, v{STW+i}")
        bf16r(a, ST2+i, ST2+i)
        a(f"v_rcp_f32 v{ST2+i}, v{ST2+i}")
        a(f"v_subrev_u32 v{T}, {i}, v{T2}")
        a(f"v_mul_f32 v{STW+i}, v{STW+i}, v{ST2+i}")
        a(f"v_ashrrev_i32 v{ST1+i}, 31, v{STW+i}")
        a(f"v_or_b32 v{ST1+i}, s46, v{ST1+i}")
        a(f"v_xor_b32 v{STW+i}, v{STW+i}, v{ST1+i}")
        a(f"v_and_or_b32 v{K+i}, v{STW+i}, s45, v{T}")
    for (i, j) in SORT8:
        a(f"v_max_u32 v{T}, v{K+i}, v{K+j}")
        a(f"v_min_u32 v{K+j}, v{K+i}, v{K+j}")
        a(f"v_mov_b32 v{K+i}, v{T}")
    a(f"v_mov_b32 v{W8}, 0")
    for rd in range(8):
        a(f"v_mov_b32 v{T}, v{K}")
        wave_red(a, "v_max_u32", [T], [TT])
        a(f"v_cmp_eq_u32 vcc, v{T}, v{K}")
        a(f"v_readfirstlane_b32 s33, v{T}")
        a("s_nop 1")
        for i in range(7 - rd):
            a(f"v_cndmask_b32 v{K+i}, v{K+i}, v{K+i+1}, vcc")
        a("s_nop 1")
        a(f"v_writelane_b32 v{W8}, s33, {rd}")
    a(f"s_lshl_b32 s3, s20, 5")
    a(f"s_add_u32 s3, s3, {CAND}")
    a(f"v_lshlrev_b32 v{T}, 2, v{LANE}")
    a(f"v_add_u32 v{T}, s3, v{T}")
    a(f"s_mov_b64 exec, 0xff")
    a(f"ds_write_b32 v{T}, v{W8}")
    a(f"s_mov_b64 exec, -1")
    a("s_waitcnt lgkmcnt(0)")
    a("s_barrier")
    CK = 56
    a(f"v_mov_b32 v{T}, {CAND}")
    for g in range(8):
        a(f"ds_read_b128 {vr(CK+4*g,4)}, v{T} offset:{16*g}")
    a(f"v_and_b32 v{T2}, 31, v{LANE}")
    a(f"v_lshlrev_b32 v{T2}, 2, v{T2}")
    a(f"v_add_u32 v{T2}, {CAND}, v{T2}")
    a(f"ds_read_b32 v{W8}, v{T2}")
    RK = K
    a(f"v_mov_b32 v{RK}, 0")
    a("s_waitcnt lgkmcnt(0)")
    for i in range(32):
        a(f"v_cmp_gt_u32 vcc, v{CK+i}, v{W8}")
        a(f"v_addc_co_u32 v{RK}, vcc, 0, v{RK}, vcc")
    a(f"s_lshl_b32 s62, s20, 1")
    for e in range(2):
        a(f"s_add_u32 s3, s62, {e}")
        a(f"v_cmp_eq_u32 vcc, s3, v{RK}")
        a(f"s_ff1_i32_b64 s33, vcc")
        a("s_nop 3")
        a(f"v_readlane_b32 s{60+e}, v{W8}, s33")
        a("s_nop 3")
        a(f"s_and_b32 s{60+e}, s{60+e}, 0x7ff")
        a(f"s_sub_u32 s{60+e}, 2047, s{60+e}")
    HR = 8; F = 16; SM = 40; TM = 44; HN = 56
    for e in range(2):
        a(f"s_lshl_b32 s33, s{60+e}, 10")
        a(f"s_add_u32 s33, s33, {HB}")
        a(f"buffer_load_dwordx4 {vr(HR+4*e,4)}, v{DV}, s[24:27], s33 offen")
    a("s_waitcnt vmcnt(0)")
    ln_rows(a, [HR, HR+4], F, SM, TM, 44)
    for e in range(2):
        for i in range(4):
            a(f"v_cvt_pk_bf16_f32 v{HN+4*e+i}, v{F+8*e+2*i}, v{F+8*e+2*i+1}")
    a(f"s_mul_i32 s3, s20, 2080")
    a(f"s_add_u32 s3, s3, {XS}")
    a(f"v_add_u32 v{T}, s3, v{DV}")
    a(f"ds_write_b128 v{T}, {vr(HN,4)}")
    a(f"ds_write_b128 v{T}, {vr(HN+4,4)} offset:1040")
    a(f"s_cmp_lg_u32 s2, 0")
    a(f"s_cbranch_scc1 {name}_nopub")
    for e in range(2):
        a(f"v_mov_b32 v{SM+e}, 0")
    for i in range(4):
        for e in range(2):
            a(f"v_dot2_f32_bf16 v{SM+e}, v{HN+4*e+i}, v{WRV+i}, v{SM+e}")
    a("s_nop 2")
    wave_red(a, "v_add_f32", [SM, SM+1], [TM, TM+1])
    for e in range(2):
        bf16r(a, SM+e, SM+e)
        a(f"v_mul_f32 v{SM+e}, {hex(f32bits(-1.4426950408889634))}, v{SM+e}")
        a(f"v_exp_f32 v{SM+e}, v{SM+e}")
        a("s_nop 0")
        a(f"v_add_f32 v{SM+e}, 1.0, v{SM+e}")
        a(f"v_rcp_f32 v{SM+e}, v{SM+e}")
        a("s_nop 0")
        bf16r(a, SM+e, SM+e)
    a(f"s_lshl_b32 s33, s20, 11")
    a(f"s_add_u32 s33, s33, {SEL+1024}")
    a(f"s_add_u32 s34, s33, 8192")
    for e in range(2):
        a(f"buffer_store_dwordx4 {vr(HR+4*e,4)}, v{DV}, s[24:27], s33 offen offset:{1024*e}")
        a(f"buffer_store_dwordx4 {vr(HN+4*e,4)}, v{DV}, s[24:27], s34 offen offset:{1024*e}")
    a(f"v_mov_b32 v{TM}, s60")
    a(f"v_mov_b32 v{TM+1}, s61")
    a(f"v_mov_b32 v{T}, 0")
    a(f"s_lshl_b32 s33, s20, 3")
    a(f"s_add_u32 s33, s33, {SEL}")
    a(f"s_mov_b64 exec, 1")
    a(f"buffer_store_dwordx2 {vr(TM,2)}, v{T}, s[24:27], s33 offen")
    a(f"buffer_store_dwordx2 {vr(SM,2)}, v{T}, s[24:27], s33 offen offset:32")
    a(f"s_mov_b64 exec, -1")
    a.label(f"{name}_nopub")
    AA = 64; BA = 65; AF = 68; BF = 76; G = 84
    a(f"v_lshrrev_b32 v{T}, 4, v{LANE}")
    a(f"v_bfe_u32 v{T2}, v{LANE}, 2, 2")
    a(f"v_lshl_add_u32 v{T2}, v{T}, 3, v{T2}")
    a(f"v_lshlrev_b32 v{AA}, 6, v{T2}")
    a(f"v_and_b32 v{T2}, 3, v{LANE}")
    a(f"v_lshl_add_u32 v{AA}, v{T2}, 3, v{AA}")
    a(f"s_lshr_b32 s3, s20, 1")
    a(f"s_lshl_b32 s3, s3, 15")
    a(f"s_and_b32 s33, s20, 1")
    a(f"s_lshl_b32 s34, s33, 5")
    a(f"s_add_u32 s3, s3, s34")
    a(f"v_add_u32 v{AA}, s3, v{AA}")
    a(f"v_and_b32 v{T2}, 7, v{LANE}")
    a(f"v_mul_u32_u24 v{T2}, 1040, v{T2}")
    a(f"v_lshl_add_u32 v{BA}, v{T}, 4, v{T2}")
    a(f"v_add_u32 v{BA}, {XS}, v{BA}")
    for r in range(4):
        a(f"v_mov_b32 v{G+r}, 0")
    a("s_waitcnt vmcnt(0) lgkmcnt(0)")
    a("s_barrier")
    def rd1(ks):
        bf = ks & 1
        a(f"ds_read_b64_tr_b16 {vr(AF+4*bf,2)}, v{AA} offset:{ks*2048}")
        a(f"ds_read_b64_tr_b16 {vr(AF+4*bf+2,2)}, v{AA} offset:{ks*2048+256}")
        a(f"ds_read_b128 {vr(BF+4*bf,4)}, v{BA} offset:{ks*64}")
    rd1(0)
    for ks in range(16):
        bf = ks & 1
        if ks < 15:
            rd1(ks+1)
            a("s_waitcnt lgkmcnt(3)")
        else:
            a("s_waitcnt lgkmcnt(0)")
        a(f"v_mfma_f32_16x16x32_bf16 {vr(G,4)}, {vr(AF+4*bf,4)}, {vr(BF+4*bf,4)}, {vr(G,4)}")
    a(f"s_lshl_b32 s34, s33, 10")
    a(f"s_add_u32 s34, s34, {UX}")
    a(f"v_add_u32 v{T}, s34, v{DV}")
    a("s_nop 7")
    for r in range(4):
        bf16r(a, G+r, G+r)
    a(f"s_cmp_lt_u32 s20, 2")
    a(f"s_cbranch_scc1 {name}_gw")
    a(f"ds_write_b128 v{T}, {vr(G,4)}")
    a("s_waitcnt lgkmcnt(0)")
    a("s_barrier")
    a(f"s_branch {name}_dn")
    a.label(f"{name}_gw")
    U = 88
    for r in range(4):
        a(f"v_mul_f32 v{U+4+r}, {hex(f32bits(-1.4426950408889634))}, v{G+r}")
        a(f"v_exp_f32 v{U+4+r}, v{U+4+r}")
        a("s_nop 0")
        a(f"v_add_f32 v{U+4+r}, 1.0, v{U+4+r}")
        a(f"v_rcp_f32 v{U+4+r}, v{U+4+r}")
        a("s_nop 0")
        a(f"v_mul_f32 v{G+r}, v{G+r}, v{U+4+r}")
        bf16r(a, G+r, G+r)
    a("s_barrier")
    a(f"ds_read_b128 {vr(U,4)}, v{T}")
    a(f"s_lshl_b32 s34, s33, 3")
    a(f"s_add_u32 s34, s34, {ACT}")
    a(f"v_add_u32 v{T}, s34, v{DV}")
    a("s_waitcnt lgkmcnt(0)")
    for r in range(4):
        a(f"v_mul_f32 v{G+r}, v{G+r}, v{U+r}")
    a(f"v_cvt_pk_bf16_f32 v{G}, v{G}, v{G+1}")
    a(f"v_cvt_pk_bf16_f32 v{G+1}, v{G+2}, v{G+3}")
    a(f"ds_write_b64 v{T}, {vr(G,2)}")
    a("s_waitcnt lgkmcnt(0)")
    a.label(f"{name}_dn")
    a("s_barrier")
    a(f"v_add_u32 v{T}, {ACT}, v{DV}")
    a(f"ds_read_b128 {vr(BF,4)}, v{T}")
    a(f"v_lshrrev_b32 v{T}, 4, v{LANE}")
    a(f"v_bfe_u32 v{T2}, v{LANE}, 2, 2")
    a(f"v_lshl_add_u32 v{T2}, v{T}, 2, v{T2}")
    a(f"v_lshlrev_b32 v{AA}, 10, v{T2}")
    a(f"v_and_b32 v{T2}, 3, v{LANE}")
    a(f"v_lshl_add_u32 v{AA}, v{T2}, 3, v{AA}")
    a(f"s_lshl_b32 s3, s20, 8")
    a(f"s_add_u32 s3, s3, 65536")
    a(f"v_add_u32 v{AA}, s3, v{AA}")
    DA = 8
    for nb in range(8):
        a(f"ds_read_b64_tr_b16 {vr(DA+4*nb,2)}, v{AA} offset:{nb*32}")
        a(f"ds_read_b64_tr_b16 {vr(DA+4*nb+2,2)}, v{AA} offset:{nb*32+16384}")
    a(f"v_mul_u32_u24 v{T}, {43*128}, v{T}")
    a(f"v_and_b32 v{T2}, 7, v{LANE}")
    a(f"v_lshl_add_u32 v{T}, v{T2}, 4, v{T}")
    a(f"s_mul_i32 s34, s20, {8*4*43*128}")
    a(f"s_lshl_b32 s3, s2, 7")
    a(f"s_add_u32 s34, s34, s3")
    a(f"s_add_u32 s34, s34, {YP}")
    a(f"s_mov_b32 s40, 0x00ff00ff")
    a(f"s_mov_b32 s41, 0x00ff00ff")
    a("s_waitcnt lgkmcnt(0)")
    DY = 40
    for nb in range(8):
        a(f"v_mfma_f32_16x16x32_bf16 {vr(DY+4*nb,4)}, {vr(DA+4*nb,4)}, {vr(BF,4)}, 0")
    a("s_nop 7")
    a(f"s_mov_b64 exec, s[40:41]")
    for nb in range(8):
        a(f"s_add_u32 s33, s34, {nb*4*43*128}")
        a(f"buffer_store_dwordx4 {vr(DY+4*nb,4)}, v{T}, s[24:27], s33 offen")
    a.label(f"{name}_end")
    a("s_endpgm")
    return 96, ACT + 1024

def gen_k5(a, name="ffn2_kernel"):
    kernel_begin(a, name)
    T = 1; T2 = 2; Y = 4; P = 8; HS = 32; HN = 34; SG = 36; IX = 37; TK = 38; PG = 39; TM = 40
    a(f"""
s_cmp_ge_u32 s2, 128
s_cbranch_scc1 {name}_end
s_load_dwordx2 s[4:5], s[0:1], 64
s_load_dwordx2 s[8:9], s[0:1], 80
v_and_b32 v{TK}, 7, v0
v_lshrrev_b32 v{PG}, 3, v0
v_lshlrev_b32 v{T}, 4, v0
s_mul_i32 s33, s2, {43*128}
s_add_u32 s33, s33, {YP}
s_mov_b32 s44, 0xffff0000
s_waitcnt lgkmcnt(0)
""")
    a(f"s_add_u32 s24, s8, s33")
    a(f"s_addc_u32 s25, s9, 0")
    a(f"s_mov_b32 s26, {43*128}")
    a(f"s_mov_b32 s27, 0x20000")
    srd(a, 28, 8, 9, WS_USED)
    srd(a, 12, 4, 5, 2097152)
    for i in range(6):
        a(f"buffer_load_dwordx4 {vr(P+4*i,4)}, v{T}, s[24:27], 0 offen offset:{1024*i}") if i < 4 else None
    a(f"v_add_u32 v{T2}, 4096, v{T}")
    a(f"buffer_load_dwordx4 {vr(P+16,4)}, v{T2}, s[24:27], 0 offen")
    a(f"buffer_load_dwordx4 {vr(P+20,4)}, v{T2}, s[24:27], 0 offen offset:1024")
    a(f"v_lshlrev_b32 v{T}, 10, v{TK}")
    a(f"s_lshl_b32 s34, s2, 3")
    a(f"s_add_u32 s35, s34, {SEL+1024}")
    a(f"s_add_u32 s36, s35, 8192")
    a(f"buffer_load_dwordx2 {vr(HS,2)}, v{T}, s[28:31], s35 offen")
    a(f"buffer_load_dwordx2 {vr(HN,2)}, v{T}, s[28:31], s36 offen")
    a(f"v_lshlrev_b32 v{T2}, 2, v{TK}")
    a(f"s_mov_b32 s37, {SEL}")
    a(f"buffer_load_dword v{IX}, v{T2}, s[28:31], s37 offen")
    a(f"buffer_load_dword v{SG}, v{T2}, s[28:31], s37 offen offset:32")
    a("s_waitcnt vmcnt(4)")
    for c in range(4):
        a(f"v_add_f32 v{Y+c}, v{P+c}, v{P+4+c}")
        a(f"v_add_f32 v{P+8+c}, v{P+8+c}, v{P+12+c}")
        a(f"v_add_f32 v{P+16+c}, v{P+16+c}, v{P+20+c}")
        a(f"v_add_f32 v{Y+c}, v{Y+c}, v{P+8+c}")
        a(f"v_add_f32 v{Y+c}, v{Y+c}, v{P+16+c}")
    a("s_nop 1")
    for c in range(4):
        a(f"v_add_f32_dpp v{Y+c}, v{Y+c}, v{Y+c} row_ror:8 row_mask:0xf bank_mask:0xf")
    for sw in ("v_permlane16_swap_b32", "v_permlane32_swap_b32"):
        for c in range(4):
            a(f"v_mov_b32 v{TM+c}, v{Y+c}")
        for c in range(4):
            a(f"{sw} v{Y+c}, v{TM+c}")
        for c in range(4):
            a(f"v_add_f32 v{Y+c}, v{Y+c}, v{TM+c}")
    a("s_waitcnt vmcnt(0)")
    for c in range(4):
        bf16r(a, Y+c, Y+c)
        a(f"v_mul_f32 v{Y+c}, v{Y+c}, v{SG}")
        bf16r(a, Y+c, Y+c)
    for (src) in (HN, HS):
        for h in range(2):
            a(f"v_lshlrev_b32 v{TM}, 16, v{src+h}")
            a(f"v_and_b32 v{TM+1}, s44, v{src+h}")
            a(f"v_add_f32 v{Y+2*h}, v{Y+2*h}, v{TM}")
            a(f"v_add_f32 v{Y+2*h+1}, v{Y+2*h+1}, v{TM+1}")
        if src == HN:
            for c in range(4):
                bf16r(a, Y+c, Y+c)
    a(f"v_cvt_pk_bf16_f32 v{Y}, v{Y}, v{Y+1}")
    a(f"v_cvt_pk_bf16_f32 v{Y+1}, v{Y+2}, v{Y+3}")
    a(f"v_lshlrev_b32 v{T}, 10, v{IX}")
    a(f"s_mov_b64 exec, 0xff")
    a(f"buffer_store_dwordx2 {vr(Y,2)}, v{T}, s[12:15], s34 offen")
    a.label(f"{name}_end")
    a("s_endpgm")
    return 48
```

```python
import sys
from asmlib import *
from layout import *
import k1, k2, k3, k4
OUT = "sequential_preLN__mha_block__moe_arch_mod__prompt.s"
def main(out=OUT):
    ref = open("sequential_preLN__mha_block__moe_arch_mod__prompt.s.ref").read().split("\n")
    head = [l for l in ref[:12] if l.startswith(";")]
    a = Asm()
    v1 = k1.gen_k1(a)
    v2 = k2.gen_k2(a)
    v3 = k3.gen_k3(a)
    v4, lds4 = k4.gen_k4(a)
    v5 = k4.gen_k5(a)
    launches = [
        f"; @launch kernel=qkv_kernel grid=(256,1,1) block=(512,1,1) lds=163840",
        f"; @launch kernel=attn_kernel grid=(256,1,1) block=(512,1,1) lds={131072+8192}",
        f"; @launch kernel=oproj_kernel grid=(256,1,1) block=(256,1,1) lds=131072",
        f"; @launch kernel=ffn1_kernel grid=({k4.NFFN+k4.NOUT},1,1) block=(256,1,1) lds={lds4}",
        f"; @launch kernel=ffn2_kernel grid=(128,1,1) block=(64,1,1) lds=0",
    ]
    txt = "\n".join(head + launches) + "\n"
    txt += '.amdgcn_target "amdgcn-amd-amdhsa--gfx950"\n.text\n'
    txt += a.text()
    txt += '.section .rodata,"a"\n'
    for n, v in (("qkv_kernel", v1), ("attn_kernel", v2), ("oproj_kernel", v3), ("ffn1_kernel", v4), ("ffn2_kernel", v5)):
        txt += kernel_desc(n, v)
    open(out, "w").write(txt)
if __name__ == "__main__":
    main(*sys.argv[1:])
```

```python
class Asm:
    def __init__(self):
        self.lines = []
        self._lab = 0
    def __call__(self, s):
        for l in s.strip("\n").split("\n"):
            self.lines.append("  " + l.strip())
    def raw(self, s):
        self.lines.append(s)
    def label(self, name):
        self.lines.append(f"{name}:")
    def newlabel(self, pfx="L"):
        self._lab += 1
        return f"{pfx}_{self._lab}"
    def text(self):
        return "\n".join(self.lines) + "\n"

def vr(a, n=1):
    return f"v{a}" if n == 1 else f"v[{a}:{a+n-1}]"
def sr(a, n=1):
    return f"s{a}" if n == 1 else f"s[{a}:{a+n-1}]"

def kernel_begin(a, name):
    a.raw(f".globl {name}")
    a.raw(".p2align 8")
    a.raw(f".type {name},@function")
    a.raw(f"{name}:")

def kernel_desc(name, nvgpr, nsgpr=96):
    acc = (nvgpr + 3) // 4 * 4
    return f""".p2align 6
.amdhsa_kernel {name}
  .amdhsa_next_free_vgpr {nvgpr}
  .amdhsa_next_free_sgpr {nsgpr}
  .amdhsa_accum_offset {acc}
  .amdhsa_group_segment_fixed_size 0
  .amdhsa_kernarg_size 88
  .amdhsa_user_sgpr_count 2
  .amdhsa_user_sgpr_kernarg_segment_ptr 1
  .amdhsa_system_sgpr_workgroup_id_x 1
.end_amdhsa_kernel
"""

def srd(a, d, lo, hi, size, off=0):
    if off:
        a(f"s_add_u32 s{d}, s{lo}, {off}")
        a(f"s_addc_u32 s{d+1}, s{hi}, 0")
    else:
        a(f"s_mov_b32 s{d}, s{lo}")
        a(f"s_mov_b32 s{d+1}, s{hi}")
    a(f"s_mov_b32 s{d+2}, {size}")
    a(f"s_mov_b32 s{d+3}, 0x20000")

import os
STAMPS = bool(int(os.environ.get("STAMPS", "0")))
STAMP_BASE = 14 << 20
class Stamper:
    def __init__(self, a, kidx):
        self.a = a; self.n = 0; self.kidx = kidx
    def start(self):
        if not STAMPS: return
        self.a("s_memrealtime s[94:95]")
    def __call__(self):
        if not STAMPS: return
        assert self.n < 14
        self.a(f"s_memtime s[{64+2*self.n}:{65+2*self.n}]")
        self.n += 1
    def reset(self, n):
        self.n = n
    def flush(self, ws_lo, ws_hi, waveid_s, vtmp):
        if not STAMPS: return
        a = self.a
        a("s_memrealtime s[92:93]")
        a("s_waitcnt lgkmcnt(0)")
        a("s_mov_b64 exec, 1")
        a(f"s_lshl_b32 s3, s2, 4")
        a(f"s_add_u32 s3, s3, s{waveid_s}")
        a(f"s_lshl_b32 s3, s3, 6")
        a(f"s_add_u32 s3, s3, {STAMP_BASE + (self.kidx << 19)}")
        a(f"v_mov_b32 v{vtmp+16}, s3")
        for i in range(14):
            a(f"v_mov_b32 v{vtmp+i}, s{64+2*i}")
        a(f"v_mov_b32 v{vtmp+14}, s94")
        a(f"v_mov_b32 v{vtmp+15}, s92")
        for q in range(4):
            a(f"global_store_dwordx4 v{vtmp+16}, v[{vtmp+4*q}:{vtmp+4*q+3}], s[{ws_lo}:{ws_hi}] offset:{16*q}")
```

```python
from asmlib import *
from layout import *
import struct
def f32bits(x):
    return struct.unpack("<I", struct.pack("<f", x))[0]

def bf16r(a, d, s, tmp=None):
    a(f"v_cvt_pk_bf16_f32 v{d}, v{s}, v{s}")
    a(f"v_lshlrev_b32 v{d}, 16, v{d}")

def gen_k1(a, name="qkv_kernel"):
    kernel_begin(a, name)
    XB = 98304
    SCR = XB
    LANE = 1; T = 2; XA = 4; WA = 8; E = 104
    st = Stamper(a, 0)
    st.start()
    st()
    a(f"""
s_cmp_ge_u32 s2, 256
s_cbranch_scc1 {name}_end
s_load_dwordx4 s[4:7], s[0:1], 0
s_load_dwordx2 s[8:9], s[0:1], 80
v_lshrrev_b32 v{T}, 6, v0
v_and_b32 v{LANE}, 63, v0
s_and_b32 s10, s2, 7
v_readfirstlane_b32 s19, v{T}
s_lshr_b32 s11, s2, 3
s_lshr_b32 s21, s10, 1
s_lshl_b32 s21, s21, 2
s_and_b32 s3, s11, 3
s_add_u32 s21, s21, s3            ; mt
s_and_b32 s22, s10, 1
s_lshl_b32 s22, s22, 3
s_lshr_b32 s3, s11, 2
s_add_u32 s22, s22, s3            ; nt
s_mov_b32 s20, s19
s_and_b32 s43, s19, 3
s_lshl_b32 s23, s21, 2
s_add_u32 s23, s23, s43
s_lshl_b32 s30, s43, 14
s_add_u32 s30, s30, {XB}
""")
    a(f"v_and_b32 v{E}, 31, v{LANE}")
    a(f"v_lshrrev_b32 v{E+1}, 5, v{LANE}")
    a(f"v_bfe_u32 v{E+2}, v{LANE}, 1, 3")
    a(f"v_xor_b32 v{E+2}, v{E+2}, v{E+1}")
    a(f"v_lshlrev_b32 v{E+2}, 4, v{E+2}")
    a(f"v_lshl_add_u32 v{E+2}, v{E}, 7, v{E+2}")
    for s in range(4):
        a(f"v_xor_b32 v{XA+s}, {s<<5}, v{E+2}")
        a(f"v_add_u32 v{XA+s}, s30, v{XA+s}")
    a(f"v_lshlrev_b32 v{E+3}, 3, v{E+1}")
    a(f"v_bfe_u32 v{T}, v{LANE}, 2, 2")
    a(f"v_add_u32 v{E+3}, v{E+3}, v{T}")
    a(f"v_mul_u32_u24 v{E+3}, 192, v{E+3}")
    a(f"v_bfe_u32 v{T}, v{LANE}, 4, 1")
    a(f"v_lshl_add_u32 v{E+3}, v{T}, 5, v{E+3}")
    a(f"v_and_b32 v{T}, 3, v{LANE}")
    a(f"v_lshl_add_u32 v{WA}, v{T}, 3, v{E+3}")
    a(f"s_cmp_lt_u32 s20, 4")
    a(f"s_cbranch_scc1 {name}_compute")
    VW = 10; VX = 13; ONES = 20; S1 = 24; S2 = 28; XF = 32; UP = 48; WF = 56; CSA = 72
    a(f"s_lshl_b32 s28, s23, 15")
    a(f"s_mul_i32 s29, s22, 192")
    a(f"s_mul_i32 s31, s43, 3072")
    a(f"s_mul_i32 s3, s43, 192")
    a(f"s_mov_b32 s32, 43691")
    for i in range(3):
        a(f"v_add_u32 v{T}, s3, v{LANE}")
        if i: a(f"v_add_u32 v{T}, {64*i}, v{T}")
        a(f"v_mul_lo_u32 v{E}, v{T}, s32")
        a(f"v_lshrrev_b32 v{E}, 19, v{E}")
        a(f"v_mul_u32_u24 v{E+1}, 12, v{E}")
        a(f"v_sub_u32 v{E+1}, v{T}, v{E+1}")
        a(f"v_mul_u32_u24 v{E}, 3072, v{E}")
        a(f"v_lshl_add_u32 v{VW+i}, v{E+1}, 4, v{E}")
    a(f"v_lshrrev_b32 v{E}, 3, v{LANE}")
    a(f"v_lshlrev_b32 v{E}, 10, v{E}")
    a(f"v_lshrrev_b32 v{E+1}, 4, v{LANE}")
    a(f"v_and_b32 v{E+2}, 7, v{LANE}")
    a(f"v_xor_b32 v{E+1}, v{E+1}, v{E+2}")
    for i in range(4):
        if i & 1:
            a(f"v_xor_b32 v{T}, 4, v{E+1}")
            a(f"v_lshl_add_u32 v{VX+i}, v{T}, 4, v{E}")
        else:
            a(f"v_lshl_add_u32 v{VX+i}, v{E+1}, 4, v{E}")
        if i: a(f"v_add_u32 v{VX+i}, {8192*i}, v{VX+i}")
    a(f"s_min_u32 s3, s43, 2")
    a(f"s_lshl_b32 s3, s3, 6")
    a(f"v_add_u32 v{WA}, s3, v{WA}")
    a(f"v_add_u32 v{WA+1}, 49152, v{WA}")
    a("s_waitcnt lgkmcnt(0)")
    st()
    srd(a, 12, 4, 5, 2097152)
    srd(a, 16, 6, 7, 1572864)
    def dma(c):
        a(f"s_add_u32 s33, s28, {c*128}")
        for i in range(4):
            a(f"s_add_u32 m0, s30, {(c&3)*4096 + i*1024}")
            a("s_nop 0")
            a(f"buffer_load_dwordx4 v{VX+i}, s[12:15], s33 offen lds")
        a(f"s_add_u32 s33, s29, {c*196608}")
        for i in range(3):
            a(f"s_add_u32 m0, s31, {c*12288 + i*1024}")
            a("s_nop 0")
            a(f"buffer_load_dwordx4 v{VW+i}, s[16:19], s33 offen lds")
    dma(0); dma(1)
    a(f"v_lshrrev_b32 v{T}, 1, v{LANE}")
    a(f"v_xor_b32 v{T}, v{T}, v{LANE}")
    a(f"v_and_b32 v{T}, 8, v{T}")
    a(f"v_cmp_eq_u32 vcc, 0, v{T}")
    a(f"v_mov_b32 v{T}, 0x3f803f80")
    for r in range(4):
        a(f"v_mov_b32 v{S1+r}, 0")
        a(f"v_mov_b32 v{S2+r}, 0")
        a(f"v_mov_b32 v{CSA+r}, 0")
    for r in range(4):
        a(f"v_cndmask_b32 v{ONES+r}, 0, v{T}, vcc")
    a(f"s_mov_b32 s44, 0xffff0000")
    st()
    issued = 2
    for c in range(8):
        a(f"s_waitcnt vmcnt({7*(issued-1-c)})")
        a("s_barrier")
        st()
        tgt = min(8, c + 3)
        first = True
        while issued < tgt:
            dma(issued); issued += 1
        for s in range(4):
            a(f"ds_read_b128 {vr(XF+4*s,4)}, v{XA+s} offset:{(c&3)*4096}")
        for s in range(4):
            for v in range(2):
                off = (16*(4*c+s) + 4*v)*192
                base = WA
                if off >= 49152:
                    off -= 49152; base = WA+1
                a(f"ds_read_b64_tr_b16 {vr(WF+4*s+2*v,2)}, v{base} offset:{off}")
        for s in range(4):
            a(f"s_waitcnt lgkmcnt({11-s})")
            for i in range(4):
                x = XF + 4*s + i
                a(f"v_lshlrev_b32 v{UP+2*i}, 16, v{x}")
                a(f"v_and_b32 v{UP+2*i+1}, s44, v{x}")
            for i in range(8):
                a(f"v_add_f32 v{S1+(i&3)}, v{S1+(i&3)}, v{UP+i}")
        for s in range(4):
            for i in range(4):
                x = XF + 4*s + i
                a(f"v_dot2_f32_bf16 v{S2+i}, v{x}, v{x}, v{S2+i}")
        a("s_waitcnt lgkmcnt(0)")
        for s in range(4):
            a(f"v_mfma_f32_16x16x32_bf16 {vr(CSA,4)}, {vr(WF+4*s,4)}, {vr(ONES,4)}, {vr(CSA,4)}")
    for S in (S1, S2):
        a(f"v_add_f32 v{S}, v{S}, v{S+1}")
        a(f"v_add_f32 v{S+2}, v{S+2}, v{S+3}")
        a(f"v_add_f32 v{S}, v{S}, v{S+2}")
        a(f"v_mov_b32 v{S+1}, v{S}")
    a("s_nop 1")
    a(f"v_permlane32_swap_b32 v{S1}, v{S1+1}")
    a(f"v_permlane32_swap_b32 v{S2}, v{S2+1}")
    a("s_nop 1")
    a(f"v_add_f32 v{S1}, v{S1}, v{S1+1}")
    a(f"v_add_f32 v{S2}, v{S2}, v{S2+1}")
    a(f"v_mul_f32 v{S1}, {hex(f32bits(1/512))}, v{S1}")
    a(f"v_mul_f32 v{S2}, {hex(f32bits(1/512))}, v{S2}")
    a(f"v_fma_f32 v{S2}, -v{S1}, v{S1}, v{S2}")
    a(f"v_max_f32 v{S2}, 0, v{S2}")
    bf16r(a, S1, S1)
    bf16r(a, S2, S2)
    a(f"v_add_f32 v{S2}, {hex(f32bits(1e-5))}, v{S2}")
    bf16r(a, S2, S2)
    a(f"v_sqrt_f32 v{S2}, v{S2}")
    a(f"s_lshl_b32 s3, s43, 8")
    a(f"s_add_u32 s3, s3, {SCR+512}")
    bf16r(a, S2, S2)
    a(f"v_rcp_f32 v{S2}, v{S2}")
    a(f"v_lshlrev_b32 v{T}, 2, v{LANE}")
    a(f"v_add_u32 v{T}, s3, v{T}")
    a(f"v_cmp_lt_u32 vcc, 31, v{LANE}")
    a(f"v_lshrrev_b32 v{E+1}, 4, v{LANE}")
    a(f"s_lshl_b32 s3, s43, 7")
    a(f"s_add_u32 s3, s3, {SCR}")
    a(f"v_cndmask_b32 v{S1}, v{S1}, v{S2}, vcc")
    a(f"v_lshlrev_b32 v{E+1}, 4, v{E+1}")
    a(f"v_bfe_u32 v{E+2}, v{LANE}, 3, 1")
    a(f"v_lshl_add_u32 v{E+1}, v{E+2}, 6, v{E+1}")
    a(f"v_add_u32 v{E+1}, s3, v{E+1}")
    a(f"ds_write_b32 v{T}, v{S1}")
    a(f"s_mov_b32 s40, 0x01010101")
    a(f"s_mov_b32 s41, 0x01010101")
    a(f"s_mov_b64 exec, s[40:41]")
    a(f"ds_write_b128 v{E+1}, {vr(CSA,4)}")
    a(f"s_mov_b64 exec, -1")
    a("s_waitcnt lgkmcnt(0)")
    a("s_barrier")
    st()
    st.flush(8, 9, 20, 24)
    a("s_endpgm")
    a.label(f"{name}_compute")
    XF = 24; WF = 32; ACC = 56
    a(f"v_add_u32 v{WA+1}, 49152, v{WA}")
    for r in range(ACC, ACC+48):
        a(f"v_mov_b32 v{r}, 0")
    a("s_waitcnt lgkmcnt(0)")
    srd(a, 24, 8, 9, WS_USED)
    srd(a, 12, 4, 5, 2097152)
    srd(a, 16, 6, 7, 1572864)
    a(f"s_and_b32 s3, s11, 3")
    a(f"s_lshl_b32 s3, s3, 1")
    a(f"s_lshr_b32 s33, s20, 1")
    a(f"s_add_u32 s3, s3, s33")
    a(f"s_cmp_ge_u32 s3, 6")
    a(f"s_cselect_b32 s33, 6, 0")
    a(f"s_sub_u32 s3, s3, s33")
    a(f"s_add_u32 s3, s3, 2")
    a(f"s_mul_i32 s3, s3, 196608")
    a(f"s_mul_i32 s33, s22, 192")
    a(f"s_add_u32 s3, s3, s33")
    a(f"s_and_b32 s33, s20, 1")
    a(f"s_lshl_b32 s33, s33, 7")
    a(f"s_add_u32 s3, s3, s33")
    a(f"v_mul_u32_u24 v{T}, 3072, v{LANE}")
    a(f"buffer_load_dword v{E}, v{T}, s[16:19], s3 offen")
    a(f"s_cmp_ge_u32 s20, 2")
    a(f"s_cbranch_scc1 {name}_nopf")
    a(f"s_lshr_b32 s3, s11, 2")
    a(f"s_cmp_ge_u32 s3, 6")
    a(f"s_cselect_b32 s33, 6, 0")
    a(f"s_sub_u32 s3, s3, s33")
    a(f"s_add_u32 s3, s3, 2")
    a(f"s_lshl_b32 s3, s3, 7")
    a(f"s_lshl_b32 s33, s21, 17")
    a(f"s_add_u32 s3, s3, s33")
    a(f"s_lshl_b32 s33, s20, 16")
    a(f"s_add_u32 s3, s3, s33")
    a(f"v_lshlrev_b32 v{T}, 10, v{LANE}")
    a(f"buffer_load_dword v{E+1}, v{T}, s[12:15], s3 offen")
    a.label(f"{name}_nopf")
    a(f"""
s_cmp_ge_u32 s2, 6
s_cbranch_scc1 {name}_nz
v_lshlrev_b32 v{T}, 4, v0
s_lshl_b32 s3, s2, 12
s_add_u32 s3, s3, {ST}
buffer_store_dwordx4 v[{ACC}:{ACC+3}], v{T}, s[24:27], s3 offen
""")
    a.label(f"{name}_nz")
    a(f"""
s_cmp_ge_u32 s22, 11
s_cbranch_scc1 {name}_v3
s_cmp_eq_u32 s22, 10
s_cbranch_scc1 {name}_v1
""")
    def reads(ks):
        c, s = ks >> 2, ks & 3
        bf = ks & 1
        out = [f"ds_read_b128 {vr(XF+4*bf,4)}, v{XA+s} offset:{(c&3)*4096}"]
        for b in range(3):
            for v in range(2):
                off = (16*ks + 4*v)*192 + 64*b
                base = WA
                if off >= 49152:
                    off -= 49152; base = WA+1
                out.append(f"ds_read_b64_tr_b16 {vr(WF+12*bf+4*b+2*v,2)}, v{base} offset:{off}")
        return out
    def variant(tag, orient):
        a.label(f"{name}_{tag}")
        st.reset(3)
        for c in range(8):
            a("s_barrier")
            st()
            for r in reads(4*c): a(r)
            for s in range(4):
                ks = 4*c + s
                bf = ks & 1
                nx = reads(ks+1) if s < 3 else []
                xf = XF + 4*bf
                groups = [nx[0:3], nx[3:5], nx[5:7]]
                issued_next = 0
                for b in range(3):
                    a(f"s_waitcnt lgkmcnt({(2-b)*2 + issued_next})")
                    wf = WF + 12*bf + 4*b
                    acc = vr(ACC+16*b, 16)
                    if orient[b] == 0:
                        a(f"v_mfma_f32_32x32x16_bf16 {acc}, {vr(wf,4)}, {vr(xf,4)}, {acc}")
                    else:
                        a(f"v_mfma_f32_32x32x16_bf16 {acc}, {vr(xf,4)}, {vr(wf,4)}, {acc}")
                    for r in groups[b]: a(r)
                    issued_next += len(groups[b])
        R31, HALF, A1, A2, MBV, RSV, VO = E, E+1, E+2, E+3, E+4, E+5, E+6
        CSR = [24, 40, 8] if False else None
        a("s_waitcnt vmcnt(0)")
        a(f"v_and_b32 v{R31}, 31, v{LANE}")
        a(f"v_lshrrev_b32 v{HALF}, 5, v{LANE}")
        a(f"v_lshlrev_b32 v{A1}, 4, v{HALF}")
        a(f"v_add_u32 v{A1}, {SCR}, v{A1}")
        a(f"v_lshlrev_b32 v{A2}, 2, v{R31}")
        a(f"v_add_u32 v{A2}, {SCR}, v{A2}")
        a(f"s_lshl_b32 s3, s43, 8")
        a(f"v_add_u32 v{T}, s3, v{A2}")
        a(f"v_add_u32 v{T+1}, s3, v{A1}")
        if any(orient):
            a(f"v_bfe_u32 v{VO}, v{LANE}, 4, 1")
            a(f"v_lshlrev_b32 v{VO}, 17, v{VO}")
            a(f"v_lshl_add_u32 v{VO}, v{HALF}, 8, v{VO}")
            a(f"v_and_b32 v{VO+1}, 15, v{LANE}")
            a(f"v_lshl_add_u32 v{VO}, v{VO+1}, 4, v{VO}")
        DV = VO + 1
        a(f"v_lshlrev_b32 v{DV}, 4, v{LANE}")
        for b in range(3):
            a(f"s_mul_i32 s34, s22, 3")
            a(f"s_add_u32 s34, s34, {b}")
            a(f"s_and_b32 s35, s34, 15")
            a(f"s_lshl_b32 s35, s35, 7")
            a(f"s_add_u32 s35, s35, s23")
            if orient[b] == 0:
                a(f"s_lshl_b32 s36, s35, 10")
                a(f"s_lshl_b32 s37, s35, 11")
                a(f"s_add_u32 s37, s37, {KV}")
                a(f"s_cmp_lt_u32 s34, 16")
                a(f"s_cselect_b32 s{46+2*b}, s36, s37")
                a(f"s_cselect_b32 s38, 1, 2")
                a(f"s_cselect_b32 s{52+b}, {hex(f32bits(QSCALE))}, 1.0")
                a(f"s_lshl_b32 s38, s38, 16")
                a(f"s_add_u32 s{47+2*b}, s{46+2*b}, s38")
            else:
                a(f"s_lshl_b32 s37, s35, 11")
                a(f"s_add_u32 s{46+2*b}, s37, {KV+1024}")
        st()
        a("s_barrier")
        st()
        CS0 = 8
        TM, TR = E + 8, E + 24
        if not all(orient):
            a(f"ds_read_b32 v{MBV}, v{T} offset:512")
            a(f"ds_read_b32 v{RSV}, v{T} offset:640")
        for b in range(3):
            if orient[b] == 0:
                for g in range(4):
                    a(f"ds_read_b128 {vr(CS0+16*b+4*g,4)}, v{A1} offset:{128*b+32*g}")
            else:
                a(f"ds_read_b32 v{CS0+16*b}, v{A2} offset:{128*b}")
        if any(orient):
            for g in range(4):
                a(f"ds_read_b128 {vr(TM+4*g,4)}, v{T+1} offset:{512+32*g}")
                a(f"ds_read_b128 {vr(TR+4*g,4)}, v{T+1} offset:{640+32*g}")
        a("s_waitcnt lgkmcnt(0)")
        for b in range(3):
            acc = ACC + 16*b
            R = CS0 + 16*b
            if orient[b] == 0:
                a(f"v_mul_f32 v{A2}, s{52+b}, v{RSV}")
                for r in range(16):
                    a(f"v_fma_f32 v{acc+r}, -v{MBV}, v{R+r}, v{acc+r}")
                for r in range(16):
                    a(f"v_mul_f32 v{acc+r}, v{A2}, v{acc+r}")
                for i in range(8):
                    a(f"v_cvt_pk_bf16_f32 v{acc+i}, v{acc+2*i}, v{acc+2*i+1}")
                a(f"buffer_store_dwordx4 {vr(acc,4)}, v{DV}, s[24:27], s{46+2*b} offen")
                a(f"buffer_store_dwordx4 {vr(acc+4,4)}, v{DV}, s[24:27], s{47+2*b} offen")
            else:
                for r in range(16):
                    a(f"v_fma_f32 v{acc+r}, -v{TM+r}, v{R}, v{acc+r}")
                for r in range(16):
                    a(f"v_mul_f32 v{acc+r}, v{TR+r}, v{acc+r}")
                for i in range(8):
                    a(f"v_cvt_pk_bf16_f32 v{acc+i}, v{acc+2*i}, v{acc+2*i+1}")
                a(f"buffer_store_dwordx4 {vr(acc,4)}, v{VO}, s[24:27], s{46+2*b} offen")
                a(f"buffer_store_dwordx4 {vr(acc+4,4)}, v{VO}, s[24:27], s{46+2*b} offen offset:512")
        if STAMPS: a("s_waitcnt vmcnt(0)")
        st()
        st.flush(8, 9, 20, 24)
        a("s_endpgm")
    variant("v0", [0, 0, 0])
    variant("v1", [0, 0, 1])
    variant("v3", [1, 1, 1])
    a.label(f"{name}_end")
    a("s_endpgm")
    return 144
```

```python
from asmlib import *
from layout import *
from k1 import f32bits

def gen_k2(a, name="attn_kernel"):
    kernel_begin(a, name)
    SA = 0; SB = 16; O = 32; C = 48; EX = 64; P = 80; KF = 88; Q = 96; V0 = 100; V1 = 108
    LANE = 116; KA = 117; VA = 118; T = 119; T2 = 120; DV = 121
    S = [SA, SB]
    st = Stamper(a, 1)
    st.start()
    st()
    a(f"""
s_cmp_ge_u32 s2, 256
s_cbranch_scc1 {name}_end
s_load_dwordx2 s[8:9], s[0:1], 80
v_lshrrev_b32 v{T}, 6, v0
v_and_b32 v{LANE}, 63, v0
s_and_b32 s10, s2, 7
v_readfirstlane_b32 s20, v{T}
s_lshr_b32 s11, s2, 6
s_lshl_b32 s11, s11, 3
s_add_u32 s21, s10, s11           ; head
s_bfe_u32 s22, s2, 0x30003        ; j = (id>>3)&7
s_lshl_b32 s23, s22, 3
s_add_u32 s23, s23, s20           ; q tile t = 8j + w
v_lshlrev_b32 v{DV}, 4, v{LANE}   ; lane*16
s_lshl_b32 s28, s21, 6
s_add_u32 s28, s28, s23
s_lshl_b32 s28, s28, 10
s_lshl_b32 s29, s21, 17
s_lshl_b32 s3, s20, 10
s_add_u32 s29, s29, s3
s_add_u32 s29, s29, {KV}
s_lshl_b32 s30, s20, 10
s_waitcnt lgkmcnt(0)
""")
    st()
    srd(a, 24, 8, 9, WS_USED)
    a(f"buffer_load_dwordx4 {vr(Q,4)}, v{DV}, s[24:27], s28 offen")
    for i in range(16):
        a(f"s_add_u32 m0, s30, {i*8192}")
        a(f"s_add_u32 s33, s29, {i*8192}")
        a(f"buffer_load_dwordx4 v{DV}, s[24:27], s33 offen lds")
    a(f"v_mov_b32 v{KA}, v{DV}")
    a(f"v_lshrrev_b32 v{T}, 5, v{LANE}")
    a(f"v_and_b32 v{T2}, 15, v{LANE}")
    a(f"v_lshlrev_b32 v{T2}, 4, v{T2}")
    a(f"v_lshl_add_u32 v{VA}, v{T}, 8, v{T2}")
    for r in range(V0, V0+16):
        a(f"v_mov_b32 v{r}, 0x3f803f80")
    a(f"s_mov_b32 s40, 0x0000ffff")
    a(f"s_mov_b32 s41, 0x0000ffff")
    a(f"s_mov_b32 s44, 0")
    st()
    a("s_waitcnt vmcnt(12)")
    a("s_barrier")
    st()
    a(f"ds_read_b128 {vr(KF,4)}, v{KA}")
    a("s_waitcnt lgkmcnt(0)")
    a(f"v_mfma_f32_32x32x16_bf16 {vr(SA,16)}, {vr(KF,4)}, {vr(Q,4)}, 0")
    a("s_nop 15")
    def max16(dst, src, init=None):
        if init is None:
            a(f"v_max3_f32 v{dst}, v{src}, v{src+1}, v{src+2}")
            a(f"v_max_f32 v{dst}, v{dst}, v{src+3}")
            st = 4
        else:
            st = 0
        for i in range(st, 16, 2):
            a(f"v_max3_f32 v{dst}, v{dst}, v{src+i}, v{src+i+1}")
    max16(T, SA)
    a.label(f"{name}_setmax")
    a(f"v_mov_b32 v{T2}, v{T}")
    a("s_nop 1")
    a(f"v_permlane32_swap_b32 v{T}, v{T2}")
    a("s_nop 1")
    a(f"v_max_f32 v{T}, v{T}, v{T2}")
    for r in range(16):
        a(f"v_sub_f32 v{C+r}, 0, v{T}")
    for r in range(16):
        a(f"v_mov_b32 v{O+r}, 0")
    for r in range(4):
        a(f"v_mov_b32 v{P+4+r}, 0")
    def rdK(t, buf):
        a(f"ds_read_b128 {vr(KF+4*buf,4)}, v{KA} offset:{t*2048}")
    def rdV(t, buf):
        a("s_mov_b64 exec, s[40:41]")
        a(f"ds_read_b128 {vr(V0+4*buf,4)}, v{VA} offset:{t*2048+1024}")
        a(f"ds_read_b128 {vr(V1+4*buf,4)}, v{VA} offset:{t*2048+1536}")
        a("s_mov_b64 exec, -1")
    rdK(0, 0)
    rdK(1, 1)
    rdV(0, 0)
    a("s_waitcnt lgkmcnt(0)")
    a(f"v_mfma_f32_32x32x16_bf16 {vr(SA,16)}, {vr(KF,4)}, {vr(Q,4)}, {vr(C,16)}")
    a("s_mov_b32 s31, 0")
    st()
    a("s_nop 7")
    a.raw(".p2align 6")
    a.label(f"{name}_loop")
    a(f"""
s_cmp_lg_u32 s31, 1
s_cbranch_scc1 {name}_nobar
s_cmp_lg_u32 s44, 0
s_cbranch_scc1 {name}_nobar
""")
    st()
    a("""s_waitcnt vmcnt(0)
s_barrier
""")
    st()
    a.label(f"{name}_nobar")
    NT = 8
    for t in range(NT):
        cur = t & 1; nxt = cur ^ 1
        s0 = S[cur]; s1 = S[nxt]
        ex = lambda i: a(f"v_exp_f32 v{EX+i}, v{s0+i}")
        pk = lambda j: a(f"v_cvt_pk_bf16_f32 v{P+j}, v{EX+2*j}, v{EX+2*j+1}")
        a("s_waitcnt lgkmcnt(0)")
        a(f"v_mfma_f32_32x32x16_bf16 {vr(s1,16)}, {vr(KF+4*nxt,4)}, {vr(Q,4)}, {vr(C,16)}")
        rdK(t+2, cur)
        for i in range(0, 3): ex(i)
        a(f"v_mfma_f32_32x32x16_bf16 {vr(O,16)}, {vr(V1+4*nxt,4)}, {vr(P+4,4)}, {vr(O,16)}")
        rdV(t+1, nxt)
        for i in range(3, 9): ex(i)
        for j in range(4): pk(j)
        for i in range(9, 11): ex(i)
        a(f"v_mfma_f32_32x32x16_bf16 {vr(O,16)}, {vr(V0+4*cur,4)}, {vr(P,4)}, {vr(O,16)}")
        for i in range(11, 16): ex(i)
        for j in range(4, 8): pk(j)
    a(f"v_add_u32 v{KA}, {NT*2048}, v{KA}")
    a(f"v_add_u32 v{VA}, {NT*2048}, v{VA}")
    a(f"""
s_add_u32 s31, s31, 1
s_cmp_lt_u32 s31, {64//NT}
s_cbranch_scc1 {name}_loop
""")
    st()
    a(f"v_mfma_f32_32x32x16_bf16 {vr(O,16)}, {vr(V1+4,4)}, {vr(P+4,4)}, {vr(O,16)}")
    a(f"v_subrev_u32 v{KA}, {131072}, v{KA}")
    a(f"v_subrev_u32 v{VA}, {131072}, v{VA}")
    a("s_waitcnt lgkmcnt(0)")
    a("s_nop 12")
    a(f"v_mov_b32 v{T}, 0x4f800000")
    a(f"v_cmp_le_f32 vcc, v{O+8}, v{T}")
    a(f"s_cmp_eq_u64 vcc, exec")
    a(f"s_cbranch_scc1 {name}_fin")
    a(f"s_cmp_lg_u32 s44, 0")
    a(f"s_cbranch_scc1 {name}_fin")
    a(f"s_mov_b32 s44, 1")
    a(f"s_mov_b32 s31, 0")
    a(f"v_mov_b32 v{T}, 0xff800000")
    a(f"v_mov_b32 v{T2}, v{KA}")
    a.label(f"{name}_mx")
    a(f"ds_read_b128 {vr(KF,4)}, v{T2}")
    a("s_waitcnt lgkmcnt(0)")
    a(f"v_mfma_f32_32x32x16_bf16 {vr(SA,16)}, {vr(KF,4)}, {vr(Q,4)}, 0")
    a(f"v_add_u32 v{T2}, 2048, v{T2}")
    a("s_nop 15")
    max16(T, SA, init=True)
    a(f"""
s_add_u32 s31, s31, 1
s_cmp_lt_u32 s31, 64
s_cbranch_scc1 {name}_mx
s_branch {name}_setmax
""")
    a.label(f"{name}_fin")
    a(f"v_rcp_f32 v{T}, v{O+8}")
    a(f"s_lshl_b32 s28, s23, 5")
    a(f"s_add_u32 s28, s28, s21")
    a(f"s_lshl_b32 s28, s28, 10")
    a(f"s_add_u32 s28, s28, {OF}")
    for r in range(8):
        a(f"v_mul_f32 v{O+r}, v{T}, v{O+r}")
    for i in range(4):
        a(f"v_cvt_pk_bf16_f32 v{O+i}, v{O+2*i}, v{O+2*i+1}")
    a(f"buffer_store_dwordx4 {vr(O,4)}, v{DV}, s[24:27], s28 offen")
    st()
    if STAMPS: a("s_waitcnt vmcnt(0)")
    st()
    st.flush(8, 9, 20, 64)
    a.label(f"{name}_end")
    a("s_endpgm")
    return 128
```

```python
from asmlib import *
from layout import *
from k1 import f32bits

def gen_k3(a, name="oproj_kernel"):
    kernel_begin(a, name)
    LANE = 1; DV = 2; WV = 3; OA = 4; WA = 5; T = 6; T2 = 7; HALF = 8; R31 = 9; XO = 10; ONES = 11
    XR = 12
    WR = 20
    OFr = 28
    WFr = 36
    ACC = 44
    E = 60
    st = Stamper(a, 2)
    st.start()
    st()
    a(f"""
s_cmp_ge_u32 s2, 256
s_cbranch_scc1 {name}_end
s_load_dwordx2 s[4:5], s[0:1], 0
s_load_dwordx2 s[6:7], s[0:1], 16
s_load_dwordx2 s[10:11], s[0:1], 32
s_load_dwordx2 s[8:9], s[0:1], 80
v_lshrrev_b32 v{T}, 6, v0
v_and_b32 v{LANE}, 63, v0
s_and_b32 s3, s2, 7
v_readfirstlane_b32 s20, v{T}
s_lshr_b32 s33, s2, 3
s_lshl_b32 s21, s3, 2
s_and_b32 s3, s33, 3
s_add_u32 s21, s21, s3            ; mt (0..31)
s_lshr_b32 s22, s33, 2            ; nt (0..7)
s_lshr_b32 s34, s20, 1            ; wr
s_and_b32 s35, s20, 1             ; wc
v_lshlrev_b32 v{DV}, 4, v{LANE}
v_lshrrev_b32 v{HALF}, 5, v{LANE}
v_and_b32 v{R31}, 31, v{LANE}
v_lshrrev_b32 v{T}, 3, v{LANE}
v_lshlrev_b32 v{T}, 10, v{T}
v_bfe_u32 v{T2}, v{LANE}, 4, 1
v_lshlrev_b32 v{T2}, 2, v{T2}
v_and_b32 v{WV}, 7, v{LANE}
v_xor_b32 v{WV}, v{WV}, v{T2}
v_lshl_add_u32 v{WV}, v{WV}, 4, v{T}
v_lshlrev_b32 v{XO}, 10, v{R31}
v_lshl_add_u32 v{XO}, v{HALF}, 4, v{XO}
s_lshl_b32 s36, s21, 1
s_add_u32 s36, s36, s34
s_lshl_b32 s37, s36, 15
s_lshl_b32 s38, s22, 1
s_add_u32 s38, s38, s35
s_lshl_b32 s39, s38, 6
s_add_u32 s37, s37, s39           ; x/h soffset
v_lshlrev_b32 v{T}, 3, v{HALF}
s_waitcnt lgkmcnt(0)
""")
    st()
    srd(a, 12, 4, 5, 2097152)
    srd(a, 16, 6, 7, 524288)
    srd(a, 24, 8, 9, WS_USED)
    srd(a, 28, 10, 11, 1024)
    a(f"buffer_load_dwordx4 {vr(XR,4)}, v{XO}, s[12:15], s37 offen")
    a(f"buffer_load_dwordx4 {vr(XR+4,4)}, v{XO}, s[12:15], s37 offen offset:32")
    for g in range(4):
        a(f"buffer_load_dwordx2 {vr(WR+2*g,2)}, v{T}, s[28:31], s39 offen offset:{16*g}")
    a(f"s_lshl_b32 s40, s21, 16")
    a(f"s_add_u32 s40, s40, {OF}")
    a(f"s_lshl_b32 s41, s34, 15")
    a(f"s_lshl_b32 s3, s35, 12")
    a(f"s_add_u32 s41, s41, s3")
    a(f"s_add_u32 s40, s40, s41")
    a(f"s_lshl_b32 s42, s20, 12")
    a(f"s_add_u32 s42, s42, 65536")
    a(f"s_lshl_b32 s43, s20, 15")
    a(f"s_lshl_b32 s3, s22, 7")
    a(f"s_add_u32 s43, s43, s3")
    for c in range(4):
        for i in range(4):
            a(f"s_add_u32 m0, s41, {c*8192 + i*1024}")
            a(f"s_add_u32 s33, s40, {c*8192 + i*1024}")
            a(f"buffer_load_dwordx4 v{DV}, s[24:27], s33 offen lds")
        for i in range(4):
            a(f"s_add_u32 m0, s42, {c*16384 + i*1024}")
            a(f"s_add_u32 s33, s43, {c*131072 + i*8192}")
            a(f"buffer_load_dwordx4 v{WV}, s[16:19], s33 offen lds")
    st()
    a(f"s_lshl_b32 s3, s34, 15")
    a(f"v_add_u32 v{OA}, s3, v{DV}")
    a(f"v_bfe_u32 v{T}, v{LANE}, 2, 2")
    a(f"v_lshl_add_u32 v{T2}, v{HALF}, 2, v{T}")
    a(f"v_lshlrev_b32 v{WA}, 7, v{T2}")
    a(f"v_bfe_u32 v{T}, v{LANE}, 3, 1")
    a(f"v_lshlrev_b32 v{T}, 6, v{T}")
    a(f"s_lshl_b32 s3, s35, 6")
    a(f"v_xor_b32 v{T}, s3, v{T}")
    a(f"v_add_u32 v{WA}, v{WA}, v{T}")
    a(f"v_bfe_u32 v{T}, v{LANE}, 4, 1")
    a(f"v_lshl_add_u32 v{WA}, v{T}, 5, v{WA}")
    a(f"v_and_b32 v{T}, 3, v{LANE}")
    a(f"v_lshl_add_u32 v{WA}, v{T}, 3, v{WA}")
    a(f"v_add_u32 v{WA}, 65536, v{WA}")
    a(f"v_mov_b32 v{ONES}, 0x3f803f80")
    for r in range(16):
        a(f"v_mov_b32 v{ACC+r}, 0")
    def reads(hh):
        bf = hh & 1
        a(f"ds_read_b128 {vr(OFr+4*bf,4)}, v{OA} offset:{hh*1024}")
        a(f"ds_read_b64_tr_b16 {vr(WFr+4*bf,2)}, v{WA} offset:{hh*2048}")
        a(f"ds_read_b64_tr_b16 {vr(WFr+4*bf+2,2)}, v{WA} offset:{hh*2048+1024}")
    for c in range(4):
        a(f"s_waitcnt vmcnt({24-8*c})")
        a("s_barrier")
        st()
        reads(8*c)
        for s in range(8):
            hh = 8*c + s
            bf = hh & 1
            if s < 7:
                reads(hh+1)
                a("s_waitcnt lgkmcnt(3)")
            else:
                a("s_waitcnt lgkmcnt(0)")
            a(f"v_mfma_f32_32x32x16_bf16 {vr(ACC,16)}, {vr(WFr+4*bf,4)}, {vr(OFr+4*bf,4)}, {vr(ACC,16)}")
    st()
    for q in range(2):
        a(f"v_permlane32_swap_b32 v{XR+4*q}, v{XR+4*q+2}")
        a(f"v_permlane32_swap_b32 v{XR+4*q+1}, v{XR+4*q+3}")
    S1, S2, SW = E, E+1, E+2
    a(f"v_mov_b32 v{S1}, 0")
    a(f"v_mov_b32 v{S2}, 0")
    a(f"v_mov_b32 v{SW}, 0")
    a(f"s_mov_b32 s44, 0xffff0000")
    a("s_nop 7")
    HP = E + 4
    for i in range(8):
        a(f"v_cvt_pk_bf16_f32 v{T}, v{ACC+2*i}, v{ACC+2*i+1}")
        a(f"v_lshlrev_b32 v{ACC+2*i}, 16, v{T}")
        a(f"v_and_b32 v{ACC+2*i+1}, s44, v{T}")
        a(f"v_lshlrev_b32 v{T}, 16, v{XR+i}")
        a(f"v_and_b32 v{T2}, s44, v{XR+i}")
        a(f"v_add_f32 v{ACC+2*i}, v{ACC+2*i}, v{T}")
        a(f"v_add_f32 v{ACC+2*i+1}, v{ACC+2*i+1}, v{T2}")
        a(f"v_cvt_pk_bf16_f32 v{HP+i}, v{ACC+2*i}, v{ACC+2*i+1}")
    for i in range(8):
        a(f"v_dot2_f32_bf16 v{S1}, v{HP+i}, v{ONES}, v{S1}")
        a(f"v_dot2_f32_bf16 v{S2}, v{HP+i}, v{HP+i}, v{S2}")
        a(f"v_dot2_f32_bf16 v{SW}, v{HP+i}, v{WR+i}, v{SW}")
    for q in range(2):
        a(f"v_permlane32_swap_b32 v{HP+4*q}, v{HP+4*q+2}")
        a(f"v_permlane32_swap_b32 v{HP+4*q+1}, v{HP+4*q+3}")
    a(f"s_add_u32 s33, s37, {HB}")
    a("s_nop 0")
    a(f"buffer_store_dwordx4 {vr(HP,4)}, v{XO}, s[24:27], s33 offen")
    a(f"buffer_store_dwordx4 {vr(HP+4,4)}, v{XO}, s[24:27], s33 offen offset:32")
    a(f"v_mov_b32 v{T}, v{SW}")
    a("s_nop 1")
    a(f"v_permlane32_swap_b32 v{S1}, v{S2}")
    a(f"v_permlane32_swap_b32 v{SW}, v{T}")
    a("s_nop 1")
    a(f"v_add_f32 v{S1}, v{S1}, v{S2}")
    a(f"v_add_f32 v{SW}, v{SW}, v{T}")
    a(f"v_lshlrev_b32 v{T}, 2, v{R31}")
    a(f"v_lshl_add_u32 v{T2}, v{HALF}, 13, v{T}")
    a(f"s_lshl_b32 s33, s36, 7")
    a(f"s_add_u32 s33, s33, {ST}")
    a(f"s_add_u32 s45, s33, 16384")
    a(f"buffer_atomic_add_f32 v{S1}, v{T2}, s[24:27], s33 offen")
    a(f"s_mov_b32 exec_hi, 0")
    a(f"buffer_atomic_add_f32 v{SW}, v{T}, s[24:27], s45 offen")
    st()
    if STAMPS: a("s_waitcnt vmcnt(0)")
    st()
    st.flush(8, 9, 20, 12)
    a.label(f"{name}_end")
    a("s_endpgm")
    return 80
```

```python
from asmlib import *
from layout import *
from k1 import f32bits, bf16r

DPPS = ["quad_perm:[1,0,3,2]", "quad_perm:[2,3,0,1]", "row_half_mirror", "row_mirror"]
def wave_red(a, op, regs, tmps):
    n = len(regs)
    pad = max(0, 3 - n)
    def nop():
        if pad: a(f"s_nop {pad-1}")
    a("s_nop 1")
    for d in DPPS:
        for r in regs:
            a(f"{op}_dpp v{r}, v{r}, v{r} {d} row_mask:0xf bank_mask:0xf")
        nop()
    for sw in ("v_permlane16_swap_b32", "v_permlane32_swap_b32"):
        for r, t in zip(regs, tmps):
            a(f"v_mov_b32 v{t}, v{r}")
        a("s_nop 1") if n < 3 else None
        for r, t in zip(regs, tmps):
            a(f"{sw} v{r}, v{t}")
        a("s_nop 1") if n < 3 else None
        for r, t in zip(regs, tmps):
            a(f"{op} v{r}, v{r}, v{t}")
        nop()

def ln_rows(a, rows, F, SM, TM, smask):
    n = len(rows)
    for k, R in enumerate(rows):
        for i in range(4):
            a(f"v_lshlrev_b32 v{F+8*k+2*i}, 16, v{R+i}")
            a(f"v_and_b32 v{F+8*k+2*i+1}, s{smask}, v{R+i}")
    for k in range(n):
        f = F + 8*k
        a(f"v_add_f32 v{SM+k}, v{f}, v{f+1}")
        a(f"v_add_f32 v{TM+k}, v{f+2}, v{f+3}")
        a(f"v_add_f32 v{SM+k}, v{SM+k}, v{f+4}")
        a(f"v_add_f32 v{TM+k}, v{TM+k}, v{f+5}")
        a(f"v_add_f32 v{SM+k}, v{SM+k}, v{f+6}")
        a(f"v_add_f32 v{TM+k}, v{TM+k}, v{f+7}")
        a(f"v_add_f32 v{SM+k}, v{SM+k}, v{TM+k}")
    wave_red(a, "v_add_f32", [SM+k for k in range(n)], [TM+k for k in range(n)])
    V = SM + n
    for k in range(n):
        f = F + 8*k
        a(f"v_mul_f32 v{SM+k}, {hex(f32bits(1/512))}, v{SM+k}")
        a(f"v_sub_f32 v{TM+k}, v{f}, v{SM+k}")
        a(f"v_mul_f32 v{V+k}, v{TM+k}, v{TM+k}")
        for i in range(1, 8):
            a(f"v_sub_f32 v{TM+k}, v{f+i}, v{SM+k}")
            a(f"v_fmac_f32 v{V+k}, v{TM+k}, v{TM+k}")
    wave_red(a, "v_add_f32", [V+k for k in range(n)], [TM+k for k in range(n)])
    for k in range(n):
        a(f"v_mul_f32 v{V+k}, {hex(f32bits(1/512))}, v{V+k}")
    for k in range(n):
        bf16r(a, SM+k, SM+k)
        bf16r(a, V+k, V+k)
        a(f"v_add_f32 v{V+k}, {hex(f32bits(1e-5))}, v{V+k}")
        bf16r(a, V+k, V+k)
        a(f"v_sqrt_f32 v{V+k}, v{V+k}")
        a("s_nop 0")
        bf16r(a, V+k, V+k)
        a(f"v_rcp_f32 v{V+k}, v{V+k}")
    for k in range(n):
        f = F + 8*k
        for i in range(4):
            a(f"v_sub_f32 v{f+2*i}, v{f+2*i}, v{SM+k}")
            a(f"v_sub_f32 v{f+2*i+1}, v{f+2*i+1}, v{SM+k}")
            a(f"v_cvt_pk_bf16_f32 v{TM+k}, v{f+2*i}, v{f+2*i+1}")
            a(f"v_lshlrev_b32 v{f+2*i}, 16, v{TM+k}")
            a(f"v_and_b32 v{f+2*i+1}, s{smask}, v{TM+k}")
            a(f"v_mul_f32 v{f+2*i}, v{f+2*i}, v{V+k}")
            a(f"v_mul_f32 v{f+2*i+1}, v{f+2*i+1}, v{V+k}")

NFFN = 43
NOUT = 128
SORT8 = [(0,1),(2,3),(4,5),(6,7),(0,2),(1,3),(4,6),(5,7),(1,2),(5,6),(0,4),(3,7),(1,5),(2,6),(1,4),(3,6),(2,4),(3,5),(3,4)]

def gen_k4(a, name="ffn1_kernel"):
    kernel_begin(a, name)
    LANE = 1; DV = 2; T = 3; T2 = 4
    st = Stamper(a, 3)
    st.start()
    st()
    a(f"""
s_cmp_ge_u32 s2, {NFFN+NOUT}
s_cbranch_scc1 {name}_end
s_load_dwordx2 s[4:5], s[0:1], 32
s_load_dwordx4 s[48:51], s[0:1], 40
s_load_dwordx4 s[52:55], s[0:1], 56
s_load_dwordx2 s[8:9], s[0:1], 80
v_lshrrev_b32 v{T}, 6, v0
v_and_b32 v{LANE}, 63, v0
s_mov_b32 s44, 0xffff0000
v_readfirstlane_b32 s20, v{T}
v_lshlrev_b32 v{DV}, 4, v{LANE}
s_cmp_lt_u32 s2, {NFFN}
s_cbranch_scc1 {name}_ffn
""")
    R = 8; F = 24; SM = 56; TM = 64
    a("s_waitcnt lgkmcnt(0)")
    srd(a, 24, 8, 9, WS_USED)
    srd(a, 12, 54, 55, 2097152)
    a(f"s_sub_u32 s3, s2, {NFFN}")
    a(f"s_lshl_b32 s3, s3, 2")
    a(f"s_add_u32 s3, s3, s20")
    a(f"s_lshl_b32 s21, s3, 12")
    a(f"s_add_u32 s22, s21, {HB}")
    for k in range(4):
        a(f"buffer_load_dwordx4 {vr(R+4*k,4)}, v{DV}, s[24:27], s22 offen offset:{1024*k}")
    a("s_waitcnt vmcnt(0)")
    ln_rows(a, [R+4*k for k in range(4)], F, SM, TM, 44)
    for k in range(4):
        f = F + 8*k
        for i in range(4):
            a(f"v_cvt_pk_bf16_f32 v{T}, v{f+2*i}, v{f+2*i+1}")
            a(f"v_lshlrev_b32 v{f+2*i}, 16, v{T}")
            a(f"v_and_b32 v{f+2*i+1}, s44, v{T}")
            a(f"v_lshlrev_b32 v{T}, 16, v{R+4*k+i}")
            a(f"v_and_b32 v{T2}, s44, v{R+4*k+i}")
            a(f"v_add_f32 v{f+2*i}, v{f+2*i}, v{T}")
            a(f"v_add_f32 v{f+2*i+1}, v{f+2*i+1}, v{T2}")
            a(f"v_cvt_pk_bf16_f32 v{R+4*k+i}, v{f+2*i}, v{f+2*i+1}")
        a(f"buffer_store_dwordx4 {vr(R+4*k,4)}, v{DV}, s[12:15], s21 offen offset:{1024*k}")
    a("s_endpgm")
    a.label(f"{name}_ffn")
    ST1 = 8; ST2 = 16; STW = 24; WRV = 32; GV = 36; K = 40; W8 = 48; WS_ = 49; TT = 50
    XS = 98304; CAND = XS + 8*1040 + 64; UX = CAND + 256; ACT = UX + 2048
    a(f"v_lshrrev_b32 v{T}, 2, v{LANE}")
    a(f"v_mul_u32_u24 v{T}, 2752, v{T}")
    a(f"v_and_b32 v{T2}, 3, v{LANE}")
    a(f"v_lshl_add_u32 v{GV}, v{T2}, 4, v{T}")
    a(f"v_lshlrev_b32 v{T}, 5, v0")
    a("s_waitcnt lgkmcnt(0)")
    srd(a, 24, 8, 9, WS_USED)
    srd(a, 28, 4, 5, 1024)
    srd(a, 12, 48, 49, 512*1376*2)
    srd(a, 16, 50, 51, 512*1376*2)
    srd(a, 56, 52, 53, 512*1376*2)
    a(f"s_mov_b32 s33, {ST}")
    a(f"s_mov_b32 s34, {ST+8192}")
    a(f"s_mov_b32 s35, {ST+16384}")
    for base, so in ((ST1, 33), (ST2, 34), (STW, 35)):
        a(f"buffer_load_dwordx4 {vr(base,4)}, v{T}, s[24:27], s{so} offen")
        a(f"buffer_load_dwordx4 {vr(base+4,4)}, v{T}, s[24:27], s{so} offen offset:16")
    a(f"buffer_load_dwordx4 {vr(WRV,4)}, v{DV}, s[28:31], 0 offen")
    a(f"s_lshl_b32 s36, s2, 6")
    a(f"s_mul_i32 s3, s20, {8*16*2752}")
    a(f"s_add_u32 s36, s36, s3")
    a(f"s_lshl_b32 s37, s20, 13")
    for i in range(8):
        a(f"s_add_u32 m0, s37, {i*1024}")
        a(f"s_add_u32 s33, s36, {i*16*2752}")
        a(f"buffer_load_dwordx4 v{GV}, s[12:15], s33 offen lds")
    for i in range(8):
        a(f"s_add_u32 m0, s37, {32768 + i*1024}")
        a(f"s_add_u32 s33, s36, {i*16*2752}")
        a(f"buffer_load_dwordx4 v{GV}, s[16:19], s33 offen lds")
    a(f"s_lshl_b32 s38, s2, 15")
    a(f"s_add_u32 s38, s38, s37")
    for i in range(8):
        a(f"s_add_u32 m0, s37, {65536 + i*1024}")
        a(f"s_add_u32 s33, s38, {i*1024}")
        a(f"buffer_load_dwordx4 v{DV}, s[56:59], s33 offen lds")
    a(f"v_mov_b32 v{TT}, 0x3f803f80")
    a(f"v_mov_b32 v{WS_}, 0")
    st()
    a("s_waitcnt vmcnt(24)")
    st()
    for i in range(4):
        a(f"v_dot2_f32_bf16 v{WS_}, v{WRV+i}, v{TT}, v{WS_}")
    a("s_nop 2")
    wave_red(a, "v_add_f32", [WS_], [TT])
    a(f"v_lshlrev_b32 v{T2}, 3, v0")
    a(f"v_sub_u32 v{T2}, 2047, v{T2}")
    a(f"s_mov_b32 s45, 0xfffff800")
    a(f"s_mov_b32 s46, 0x80000000")
    inv = hex(f32bits(1/512))
    for i in range(8):
        a(f"v_mul_f32 v{ST1+i}, {inv}, v{ST1+i}")
        a(f"v_mul_f32 v{ST2+i}, {inv}, v{ST2+i}")
        a(f"v_fma_f32 v{ST2+i}, -v{ST1+i}, v{ST1+i}, v{ST2+i}")
        a(f"v_max_f32 v{ST2+i}, 0, v{ST2+i}")
        bf16r(a, ST2+i, ST2+i)
        a(f"v_add_f32 v{ST2+i}, {hex(f32bits(1e-5))}, v{ST2+i}")
        bf16r(a, ST2+i, ST2+i)
        a(f"v_sqrt_f32 v{ST2+i}, v{ST2+i}")
        a(f"v_fma_f32 v{STW+i}, -v{ST1+i}, v{WS_}, v{STW+i}")
        bf16r(a, ST2+i, ST2+i)
        a(f"v_rcp_f32 v{ST2+i}, v{ST2+i}")
        a(f"v_subrev_u32 v{T}, {i}, v{T2}")
        a(f"v_mul_f32 v{STW+i}, v{STW+i}, v{ST2+i}")
        a(f"v_ashrrev_i32 v{ST1+i}, 31, v{STW+i}")
        a(f"v_or_b32 v{ST1+i}, s46, v{ST1+i}")
        a(f"v_xor_b32 v{STW+i}, v{STW+i}, v{ST1+i}")
        a(f"v_and_or_b32 v{K+i}, v{STW+i}, s45, v{T}")
    st()
    for (i, j) in SORT8:
        a(f"v_max_u32 v{T}, v{K+i}, v{K+j}")
        a(f"v_min_u32 v{K+j}, v{K+i}, v{K+j}")
        a(f"v_mov_b32 v{K+i}, v{T}")
    a(f"v_mov_b32 v{W8}, 0")
    for rd in range(8):
        a(f"v_mov_b32 v{T}, v{K}")
        wave_red(a, "v_max_u32", [T], [TT])
        a(f"v_cmp_eq_u32 vcc, v{T}, v{K}")
        a(f"v_readfirstlane_b32 s33, v{T}")
        a("s_nop 1")
        for i in range(7 - rd):
            a(f"v_cndmask_b32 v{K+i}, v{K+i}, v{K+i+1}, vcc")
        a("s_nop 1")
        a(f"v_writelane_b32 v{W8}, s33, {rd}")
    st()
    a(f"s_lshl_b32 s3, s20, 5")
    a(f"s_add_u32 s3, s3, {CAND}")
    a(f"v_lshlrev_b32 v{T}, 2, v{LANE}")
    a(f"v_add_u32 v{T}, s3, v{T}")
    a(f"s_mov_b64 exec, 0xff")
    a(f"ds_write_b32 v{T}, v{W8}")
    a(f"s_mov_b64 exec, -1")
    a("s_waitcnt lgkmcnt(0)")
    a("s_barrier")
    CK = 56
    a(f"v_mov_b32 v{T}, {CAND}")
    for g in range(8):
        a(f"ds_read_b128 {vr(CK+4*g,4)}, v{T} offset:{16*g}")
    a(f"v_and_b32 v{T2}, 31, v{LANE}")
    a(f"v_lshlrev_b32 v{T2}, 2, v{T2}")
    a(f"v_add_u32 v{T2}, {CAND}, v{T2}")
    a(f"ds_read_b32 v{W8}, v{T2}")
    RK = K
    a(f"v_mov_b32 v{RK}, 0")
    a("s_waitcnt lgkmcnt(0)")
    for i in range(32):
        a(f"v_cmp_gt_u32 vcc, v{CK+i}, v{W8}")
        a(f"v_addc_co_u32 v{RK}, vcc, 0, v{RK}, vcc")
    a(f"s_lshl_b32 s62, s20, 1")
    for e in range(2):
        a(f"s_add_u32 s3, s62, {e}")
        a(f"v_cmp_eq_u32 vcc, s3, v{RK}")
        a(f"s_ff1_i32_b64 s33, vcc")
        a("s_nop 3")
        a(f"v_readlane_b32 s{60+e}, v{W8}, s33")
        a("s_nop 3")
        a(f"s_and_b32 s{60+e}, s{60+e}, 0x7ff")
        a(f"s_sub_u32 s{60+e}, 2047, s{60+e}")
    HR = 8; F = 16; SM = 40; TM = 44; HN = 56
    st()
    for e in range(2):
        a(f"s_lshl_b32 s33, s{60+e}, 10")
        a(f"s_add_u32 s33, s33, {HB}")
        a(f"buffer_load_dwordx4 {vr(HR+4*e,4)}, v{DV}, s[24:27], s33 offen")
    a("s_waitcnt vmcnt(0)")
    st()
    ln_rows(a, [HR, HR+4], F, SM, TM, 44)
    st()
    for e in range(2):
        for i in range(4):
            a(f"v_cvt_pk_bf16_f32 v{HN+4*e+i}, v{F+8*e+2*i}, v{F+8*e+2*i+1}")
    a(f"s_mul_i32 s3, s20, 2080")
    a(f"s_add_u32 s3, s3, {XS}")
    a(f"v_add_u32 v{T}, s3, v{DV}")
    a(f"ds_write_b128 v{T}, {vr(HN,4)}")
    a(f"ds_write_b128 v{T}, {vr(HN+4,4)} offset:1040")
    a(f"s_cmp_lg_u32 s2, 0")
    a(f"s_cbranch_scc1 {name}_nopub")
    for e in range(2):
        a(f"v_mov_b32 v{SM+e}, 0")
    for i in range(4):
        for e in range(2):
            a(f"v_dot2_f32_bf16 v{SM+e}, v{HN+4*e+i}, v{WRV+i}, v{SM+e}")
    a("s_nop 2")
    wave_red(a, "v_add_f32", [SM, SM+1], [TM, TM+1])
    for e in range(2):
        bf16r(a, SM+e, SM+e)
        a(f"v_mul_f32 v{SM+e}, {hex(f32bits(-1.4426950408889634))}, v{SM+e}")
        a(f"v_exp_f32 v{SM+e}, v{SM+e}")
        a("s_nop 0")
        a(f"v_add_f32 v{SM+e}, 1.0, v{SM+e}")
        a(f"v_rcp_f32 v{SM+e}, v{SM+e}")
        a("s_nop 0")
        bf16r(a, SM+e, SM+e)
    a(f"s_lshl_b32 s33, s20, 11")
    a(f"s_add_u32 s33, s33, {SEL+1024}")
    a(f"s_add_u32 s34, s33, 8192")
    for e in range(2):
        a(f"buffer_store_dwordx4 {vr(HR+4*e,4)}, v{DV}, s[24:27], s33 offen offset:{1024*e}")
        a(f"buffer_store_dwordx4 {vr(HN+4*e,4)}, v{DV}, s[24:27], s34 offen offset:{1024*e}")
    a(f"v_mov_b32 v{TM}, s60")
    a(f"v_mov_b32 v{TM+1}, s61")
    a(f"v_mov_b32 v{T}, 0")
    a(f"s_lshl_b32 s33, s20, 3")
    a(f"s_add_u32 s33, s33, {SEL}")
    a(f"s_mov_b64 exec, 1")
    a(f"buffer_store_dwordx2 {vr(TM,2)}, v{T}, s[24:27], s33 offen")
    a(f"buffer_store_dwordx2 {vr(SM,2)}, v{T}, s[24:27], s33 offen offset:32")
    a(f"s_mov_b64 exec, -1")
    a.label(f"{name}_nopub")
    AA = 64; BA = 65; AF = 68; BF = 76; G = 84
    a(f"v_lshrrev_b32 v{T}, 4, v{LANE}")
    a(f"v_bfe_u32 v{T2}, v{LANE}, 2, 2")
    a(f"v_lshl_add_u32 v{T2}, v{T}, 3, v{T2}")
    a(f"v_lshlrev_b32 v{AA}, 6, v{T2}")
    a(f"v_and_b32 v{T2}, 3, v{LANE}")
    a(f"v_lshl_add_u32 v{AA}, v{T2}, 3, v{AA}")
    a(f"s_lshr_b32 s3, s20, 1")
    a(f"s_lshl_b32 s3, s3, 15")
    a(f"s_and_b32 s33, s20, 1")
    a(f"s_lshl_b32 s34, s33, 5")
    a(f"s_add_u32 s3, s3, s34")
    a(f"v_add_u32 v{AA}, s3, v{AA}")
    a(f"v_and_b32 v{T2}, 7, v{LANE}")
    a(f"v_mul_u32_u24 v{T2}, 1040, v{T2}")
    a(f"v_lshl_add_u32 v{BA}, v{T}, 4, v{T2}")
    a(f"v_add_u32 v{BA}, {XS}, v{BA}")
    for r in range(4):
        a(f"v_mov_b32 v{G+r}, 0")
    a("s_waitcnt vmcnt(0) lgkmcnt(0)")
    a("s_barrier")
    st()
    def rd1(ks):
        bf = ks & 1
        a(f"ds_read_b64_tr_b16 {vr(AF+4*bf,2)}, v{AA} offset:{ks*2048}")
        a(f"ds_read_b64_tr_b16 {vr(AF+4*bf+2,2)}, v{AA} offset:{ks*2048+256}")
        a(f"ds_read_b128 {vr(BF+4*bf,4)}, v{BA} offset:{ks*64}")
    rd1(0)
    for ks in range(16):
        bf = ks & 1
        if ks < 15:
            rd1(ks+1)
            a("s_waitcnt lgkmcnt(3)")
        else:
            a("s_waitcnt lgkmcnt(0)")
        a(f"v_mfma_f32_16x16x32_bf16 {vr(G,4)}, {vr(AF+4*bf,4)}, {vr(BF+4*bf,4)}, {vr(G,4)}")
    st()
    a(f"s_lshl_b32 s34, s33, 10")
    a(f"s_add_u32 s34, s34, {UX}")
    a(f"v_add_u32 v{T}, s34, v{DV}")
    a("s_nop 7")
    for r in range(4):
        bf16r(a, G+r, G+r)
    a(f"s_cmp_lt_u32 s20, 2")
    a(f"s_cbranch_scc1 {name}_gw")
    a(f"ds_write_b128 v{T}, {vr(G,4)}")
    a("s_waitcnt lgkmcnt(0)")
    a("s_barrier")
    a(f"s_branch {name}_dn")
    a.label(f"{name}_gw")
    U = 88
    for r in range(4):
        a(f"v_mul_f32 v{U+4+r}, {hex(f32bits(-1.4426950408889634))}, v{G+r}")
        a(f"v_exp_f32 v{U+4+r}, v{U+4+r}")
        a("s_nop 0")
        a(f"v_add_f32 v{U+4+r}, 1.0, v{U+4+r}")
        a(f"v_rcp_f32 v{U+4+r}, v{U+4+r}")
        a("s_nop 0")
        a(f"v_mul_f32 v{G+r}, v{G+r}, v{U+4+r}")
        bf16r(a, G+r, G+r)
    a("s_barrier")
    a(f"ds_read_b128 {vr(U,4)}, v{T}")
    a(f"s_lshl_b32 s34, s33, 3")
    a(f"s_add_u32 s34, s34, {ACT}")
    a(f"v_add_u32 v{T}, s34, v{DV}")
    a("s_waitcnt lgkmcnt(0)")
    for r in range(4):
        a(f"v_mul_f32 v{G+r}, v{G+r}, v{U+r}")
    a(f"v_cvt_pk_bf16_f32 v{G}, v{G}, v{G+1}")
    a(f"v_cvt_pk_bf16_f32 v{G+1}, v{G+2}, v{G+3}")
    a(f"ds_write_b64 v{T}, {vr(G,2)}")
    a("s_waitcnt lgkmcnt(0)")
    a.label(f"{name}_dn")
    a("s_barrier")
    st()
    a(f"v_add_u32 v{T}, {ACT}, v{DV}")
    a(f"ds_read_b128 {vr(BF,4)}, v{T}")
    a(f"v_lshrrev_b32 v{T}, 4, v{LANE}")
    a(f"v_bfe_u32 v{T2}, v{LANE}, 2, 2")
    a(f"v_lshl_add_u32 v{T2}, v{T}, 2, v{T2}")
    a(f"v_lshlrev_b32 v{AA}, 10, v{T2}")
    a(f"v_and_b32 v{T2}, 3, v{LANE}")
    a(f"v_lshl_add_u32 v{AA}, v{T2}, 3, v{AA}")
    a(f"s_lshl_b32 s3, s20, 8")
    a(f"s_add_u32 s3, s3, 65536")
    a(f"v_add_u32 v{AA}, s3, v{AA}")
    DA = 8
    for nb in range(8):
        a(f"ds_read_b64_tr_b16 {vr(DA+4*nb,2)}, v{AA} offset:{nb*32}")
        a(f"ds_read_b64_tr_b16 {vr(DA+4*nb+2,2)}, v{AA} offset:{nb*32+16384}")
    a(f"v_mul_u32_u24 v{T}, {43*128}, v{T}")
    a(f"v_and_b32 v{T2}, 7, v{LANE}")
    a(f"v_lshl_add_u32 v{T}, v{T2}, 4, v{T}")
    a(f"s_mul_i32 s34, s20, {8*4*43*128}")
    a(f"s_lshl_b32 s3, s2, 7")
    a(f"s_add_u32 s34, s34, s3")
    a(f"s_add_u32 s34, s34, {YP}")
    a(f"s_mov_b32 s40, 0x00ff00ff")
    a(f"s_mov_b32 s41, 0x00ff00ff")
    a("s_waitcnt lgkmcnt(0)")
    DY = 40
    for nb in range(8):
        a(f"v_mfma_f32_16x16x32_bf16 {vr(DY+4*nb,4)}, {vr(DA+4*nb,4)}, {vr(BF,4)}, 0")
    a("s_nop 7")
    a(f"s_mov_b64 exec, s[40:41]")
    for nb in range(8):
        a(f"s_add_u32 s33, s34, {nb*4*43*128}")
        a(f"buffer_store_dwordx4 {vr(DY+4*nb,4)}, v{T}, s[24:27], s33 offen")
    st()
    if STAMPS: a("s_waitcnt vmcnt(0)")
    st()
    st.flush(8, 9, 20, 8)
    a.label(f"{name}_end")
    a("s_endpgm")
    return 96, ACT + 1024

def gen_k5(a, name="ffn2_kernel"):
    kernel_begin(a, name)
    T = 1; T2 = 2; Y = 4; P = 8; HS = 32; HN = 34; SG = 36; IX = 37; TK = 38; PG = 39; TM = 40
    st = Stamper(a, 4)
    st.start()
    st()
    a("s_mov_b32 s20, 0")
    a(f"""
s_cmp_ge_u32 s2, 128
s_cbranch_scc1 {name}_end
s_load_dwordx2 s[4:5], s[0:1], 64
s_load_dwordx2 s[8:9], s[0:1], 80
v_and_b32 v{TK}, 7, v0
v_lshrrev_b32 v{PG}, 3, v0
v_lshlrev_b32 v{T}, 4, v0
s_mul_i32 s33, s2, {43*128}
s_add_u32 s33, s33, {YP}
s_mov_b32 s44, 0xffff0000
s_waitcnt lgkmcnt(0)
""")
    a(f"s_add_u32 s24, s8, s33")
    a(f"s_addc_u32 s25, s9, 0")
    a(f"s_mov_b32 s26, {43*128}")
    a(f"s_mov_b32 s27, 0x20000")
    srd(a, 28, 8, 9, WS_USED)
    srd(a, 12, 4, 5, 2097152)
    for i in range(6):
        a(f"buffer_load_dwordx4 {vr(P+4*i,4)}, v{T}, s[24:27], 0 offen offset:{1024*i}") if i < 4 else None
    a(f"v_add_u32 v{T2}, 4096, v{T}")
    a(f"buffer_load_dwordx4 {vr(P+16,4)}, v{T2}, s[24:27], 0 offen")
    a(f"buffer_load_dwordx4 {vr(P+20,4)}, v{T2}, s[24:27], 0 offen offset:1024")
    a(f"v_lshlrev_b32 v{T}, 10, v{TK}")
    a(f"s_lshl_b32 s34, s2, 3")
    a(f"s_add_u32 s35, s34, {SEL+1024}")
    a(f"s_add_u32 s36, s35, 8192")
    a(f"buffer_load_dwordx2 {vr(HS,2)}, v{T}, s[28:31], s35 offen")
    a(f"buffer_load_dwordx2 {vr(HN,2)}, v{T}, s[28:31], s36 offen")
    a(f"v_lshlrev_b32 v{T2}, 2, v{TK}")
    a(f"s_mov_b32 s37, {SEL}")
    a(f"buffer_load_dword v{IX}, v{T2}, s[28:31], s37 offen")
    a(f"buffer_load_dword v{SG}, v{T2}, s[28:31], s37 offen offset:32")
    st()
    a("s_waitcnt vmcnt(4)")
    st()
    for c in range(4):
        a(f"v_add_f32 v{Y+c}, v{P+c}, v{P+4+c}")
        a(f"v_add_f32 v{P+8+c}, v{P+8+c}, v{P+12+c}")
        a(f"v_add_f32 v{P+16+c}, v{P+16+c}, v{P+20+c}")
        a(f"v_add_f32 v{Y+c}, v{Y+c}, v{P+8+c}")
        a(f"v_add_f32 v{Y+c}, v{Y+c}, v{P+16+c}")
    a("s_nop 1")
    for c in range(4):
        a(f"v_add_f32_dpp v{Y+c}, v{Y+c}, v{Y+c} row_ror:8 row_mask:0xf bank_mask:0xf")
    for sw in ("v_permlane16_swap_b32", "v_permlane32_swap_b32"):
        for c in range(4):
            a(f"v_mov_b32 v{TM+c}, v{Y+c}")
        for c in range(4):
            a(f"{sw} v{Y+c}, v{TM+c}")
        for c in range(4):
            a(f"v_add_f32 v{Y+c}, v{Y+c}, v{TM+c}")
    a("s_waitcnt vmcnt(0)")
    for c in range(4):
        bf16r(a, Y+c, Y+c)
        a(f"v_mul_f32 v{Y+c}, v{Y+c}, v{SG}")
        bf16r(a, Y+c, Y+c)
    for (src) in (HN, HS):
        for h in range(2):
            a(f"v_lshlrev_b32 v{TM}, 16, v{src+h}")
            a(f"v_and_b32 v{TM+1}, s44, v{src+h}")
            a(f"v_add_f32 v{Y+2*h}, v{Y+2*h}, v{TM}")
            a(f"v_add_f32 v{Y+2*h+1}, v{Y+2*h+1}, v{TM+1}")
        if src == HN:
            for c in range(4):
                bf16r(a, Y+c, Y+c)
    a(f"v_cvt_pk_bf16_f32 v{Y}, v{Y}, v{Y+1}")
    a(f"v_cvt_pk_bf16_f32 v{Y+1}, v{Y+2}, v{Y+3}")
    a(f"v_lshlrev_b32 v{T}, 10, v{IX}")
    a(f"s_mov_b64 exec, 0xff")
    a(f"buffer_store_dwordx2 {vr(Y,2)}, v{T}, s[12:15], s34 offen")
    st()
    if STAMPS: a("s_waitcnt vmcnt(0)")
    st()
    st.flush(8, 9, 20, 8)
    a.label(f"{name}_end")
    a("s_endpgm")
    return 48
```

```python
from asmlib import *
from layout import *
from k1 import f32bits, bf16r

SPIN_MAX = 200000
import os
KVSC = os.environ.get("KVSC", " sc1")
NPF = 4

def gen_front(a, name="front_kernel"):
    kernel_begin(a, name)
    XB = 98304
    SCR = 0
    QX = 4096; RDY = 8192; DONE = 8320
    SB0 = 16384
    NBUF = 9
    LANE = 1; T = 2; XA = 4; WA = 8; E = 104
    st = Stamper(a, 0)
    st.start()
    st()
    a(f"""
s_cmp_ge_u32 s2, 256
s_cbranch_scc1 {name}_end
s_load_dwordx4 s[4:7], s[0:1], 0
s_load_dwordx4 s[56:59], s[0:1], 72
v_lshrrev_b32 v{T}, 6, v0
v_and_b32 v{LANE}, 63, v0
s_and_b32 s10, s2, 7
v_readfirstlane_b32 s20, v{T}
s_lshr_b32 s11, s2, 3
s_lshr_b32 s21, s11, 1
s_lshl_b32 s22, s10, 1
s_and_b32 s3, s11, 1
s_add_u32 s22, s22, s3
s_and_b32 s43, s20, 3             ; tb
s_lshl_b32 s23, s21, 2
s_add_u32 s23, s23, s43
s_lshl_b32 s30, s43, 14
s_add_u32 s30, s30, {XB}
s_lshl_b32 s47, s22, 18
s_add_u32 s47, s47, {KV}
s_cmp_eq_u32 s20, 8
s_cbranch_scc1 {name}_stream
""")
    a(f"v_and_b32 v{E}, 31, v{LANE}")
    a(f"v_lshrrev_b32 v{E+1}, 5, v{LANE}")
    a(f"v_bfe_u32 v{E+2}, v{LANE}, 1, 3")
    a(f"v_xor_b32 v{E+2}, v{E+2}, v{E+1}")
    a(f"v_lshlrev_b32 v{E+2}, 4, v{E+2}")
    a(f"v_lshl_add_u32 v{E+2}, v{E}, 7, v{E+2}")
    for s in range(4):
        a(f"v_xor_b32 v{XA+s}, {s<<5}, v{E+2}")
        a(f"v_add_u32 v{XA+s}, s30, v{XA+s}")
    a(f"v_lshlrev_b32 v{E+3}, 3, v{E+1}")
    a(f"v_bfe_u32 v{T}, v{LANE}, 2, 2")
    a(f"v_add_u32 v{E+3}, v{E+3}, v{T}")
    a(f"v_mul_u32_u24 v{E+3}, 192, v{E+3}")
    a(f"v_bfe_u32 v{T}, v{LANE}, 4, 1")
    a(f"v_lshl_add_u32 v{E+3}, v{T}, 5, v{E+3}")
    a(f"v_and_b32 v{T}, 3, v{LANE}")
    a(f"v_lshl_add_u32 v{WA}, v{T}, 3, v{E+3}")
    a(f"s_cmp_lt_u32 s20, 4")
    a(f"s_cbranch_scc1 {name}_compute")
    VW = 10; VX = 13; WQA = 17; ONES = 20; S1 = 24; S2 = 28; XF = 32; WF = 56; CSA = 72; ON1 = 76; WQ = 80; QACC = 112; XF2 = 128
    a(f"s_lshl_b32 s28, s23, 15")
    a(f"s_lshl_b32 s29, s22, 6")
    a(f"s_mul_i32 s31, s43, 3072")
    a(f"s_mul_i32 s3, s43, 192")
    a(f"s_mov_b32 s32, 43691")
    for i in range(3):
        a(f"v_add_u32 v{T}, s3, v{LANE}")
        if i: a(f"v_add_u32 v{T}, {64*i}, v{T}")
        a(f"v_mul_lo_u32 v{E}, v{T}, s32")
        a(f"v_lshrrev_b32 v{E}, 19, v{E}")
        a(f"v_mul_u32_u24 v{E+1}, 12, v{E}")
        a(f"v_sub_u32 v{E+1}, v{T}, v{E+1}")
        a(f"v_mul_u32_u24 v{E}, 3072, v{E}")
        a(f"v_lshrrev_b32 v{E+2}, 2, v{E+1}")
        a(f"v_lshl_add_u32 v{E}, v{E+2}, 10, v{E}")
        a(f"v_and_b32 v{E+1}, 3, v{E+1}")
        a(f"v_lshl_add_u32 v{VW+i}, v{E+1}, 4, v{E}")
    a(f"v_lshrrev_b32 v{E}, 3, v{LANE}")
    a(f"v_lshlrev_b32 v{E}, 10, v{E}")
    a(f"v_lshrrev_b32 v{E+1}, 4, v{LANE}")
    a(f"v_and_b32 v{E+2}, 7, v{LANE}")
    a(f"v_xor_b32 v{E+1}, v{E+1}, v{E+2}")
    for i in range(4):
        if i & 1:
            a(f"v_xor_b32 v{T}, 4, v{E+1}")
            a(f"v_lshl_add_u32 v{VX+i}, v{T}, 4, v{E}")
        else:
            a(f"v_lshl_add_u32 v{VX+i}, v{E+1}, 4, v{E}")
        if i: a(f"v_add_u32 v{VX+i}, {8192*i}, v{VX+i}")
    a(f"v_mov_b32 v{WQA}, v{WA}")
    a(f"v_add_u32 v{WQA+1}, 49152, v{WA}")
    a(f"s_min_u32 s3, s43, 2")
    a(f"s_lshl_b32 s3, s3, 6")
    a(f"v_add_u32 v{WA}, s3, v{WA}")
    a(f"v_add_u32 v{WA+1}, 49152, v{WA}")
    a(f"s_lshr_b32 s45, s11, 1")
    a(f"s_and_b32 s3, s11, 1")
    a(f"s_lshl_b32 s3, s3, 2")
    a(f"s_add_u32 s45, s45, s3")
    a("s_waitcnt lgkmcnt(0)")
    st()
    srd(a, 12, 4, 5, 2097152)
    srd(a, 16, 6, 7, 1572864)
    def dma(c):
        a(f"s_add_u32 s46, s45, {c}")
        a(f"s_and_b32 s46, s46, 7")
        a(f"s_lshl_b32 s33, s46, 7")
        a(f"s_add_u32 s33, s33, s28")
        for i in range(4):
            a(f"s_add_u32 m0, s30, {(c&3)*4096 + i*1024}")
            a("s_nop 0")
            a(f"buffer_load_dwordx4 v{VX+i}, s[12:15], s33 offen lds")
        a(f"s_mul_i32 s33, s46, 196608")
        a(f"s_add_u32 s33, s33, s29")
        for i in range(3):
            a(f"s_add_u32 m0, s31, {c*12288 + i*1024}")
            a("s_nop 0")
            a(f"buffer_load_dwordx4 v{VW+i}, s[16:19], s33 offen lds")
    dma(0); dma(1)
    a(f"v_lshrrev_b32 v{T}, 1, v{LANE}")
    a(f"v_xor_b32 v{T}, v{T}, v{LANE}")
    a(f"v_and_b32 v{T}, 8, v{T}")
    a(f"v_cmp_eq_u32 vcc, 0, v{T}")
    a(f"v_mov_b32 v{ON1}, 0x3f803f80")
    for r in range(4):
        a(f"v_mov_b32 v{S1+r}, 0")
        a(f"v_mov_b32 v{S2+r}, 0")
        a(f"v_mov_b32 v{CSA+r}, 0")
    for r in range(4):
        a(f"v_cndmask_b32 v{ONES+r}, 0, v{ON1}, vcc")
    for r in range(16):
        a(f"v_mov_b32 v{QACC+r}, 0")
    def trq(dst, ks, v):
        off = (16*ks + 4*v)*192
        base = WQA
        if off >= 49152:
            off -= 49152; base = WQA+1
        a(f"ds_read_b64_tr_b16 {vr(dst+2*v,2)}, v{base} offset:{off}")
    st()
    issued = 2
    for c in range(8):
        a(f"s_waitcnt vmcnt({7*(issued-1-c)})")
        a("s_barrier")
        if c in (0, 4, 7): st()
        tgt = min(8, c + 3)
        while issued < tgt:
            dma(issued); issued += 1
        for s in range(4):
            a(f"ds_read_b128 {vr(XF+4*s,4)}, v{XA+s} offset:{(c&3)*4096}")
        for s in range(4):
            for v in range(2):
                off = (16*(4*c+s) + 4*v)*192
                base = WA
                if off >= 49152:
                    off -= 49152; base = WA+1
                a(f"ds_read_b64_tr_b16 {vr(WF+4*s+2*v,2)}, v{base} offset:{off}")
        if c < 4:
            for s in range(4):
                trq(WQ+4*s, 4*c+s, 0); trq(WQ+4*s, 4*c+s, 1)
        a("s_waitcnt lgkmcnt(8)")
        for s in range(4):
            for i in range(4):
                x = XF + 4*s + i
                a(f"v_dot2_f32_bf16 v{S1+i}, v{x}, v{ON1}, v{S1+i}")
                a(f"v_dot2_f32_bf16 v{S2+i}, v{x}, v{x}, v{S2+i}")
        a("s_waitcnt lgkmcnt(0)")
        for s in range(4):
            a(f"v_mfma_f32_16x16x32_bf16 {vr(CSA,4)}, {vr(WF+4*s,4)}, {vr(ONES,4)}, {vr(CSA,4)}")
            if c < 4:
                a(f"v_mfma_f32_32x32x16_bf16 {vr(QACC,16)}, {vr(WQ+4*s,4)}, {vr(XF+4*s,4)}, {vr(QACC,16)}")
    for S in (S1, S2):
        a(f"v_add_f32 v{S}, v{S}, v{S+1}")
        a(f"v_add_f32 v{S+2}, v{S+2}, v{S+3}")
        a(f"v_add_f32 v{S}, v{S}, v{S+2}")
        a(f"v_mov_b32 v{S+1}, v{S}")
    a("s_nop 1")
    a(f"v_permlane32_swap_b32 v{S1}, v{S1+1}")
    a(f"v_permlane32_swap_b32 v{S2}, v{S2+1}")
    a("s_nop 1")
    a(f"v_add_f32 v{S1}, v{S1}, v{S1+1}")
    a(f"v_add_f32 v{S2}, v{S2}, v{S2+1}")
    a(f"v_mul_f32 v{S1}, {hex(f32bits(1/512))}, v{S1}")
    a(f"v_mul_f32 v{S2}, {hex(f32bits(1/512))}, v{S2}")
    a(f"v_fma_f32 v{S2}, -v{S1}, v{S1}, v{S2}")
    a(f"v_max_f32 v{S2}, 0, v{S2}")
    bf16r(a, S1, S1)
    bf16r(a, S2, S2)
    a(f"v_add_f32 v{S2}, {hex(f32bits(1e-5))}, v{S2}")
    bf16r(a, S2, S2)
    a(f"v_sqrt_f32 v{S2}, v{S2}")
    a(f"s_lshl_b32 s3, s43, 8")
    a(f"s_add_u32 s3, s3, {SCR+512}")
    bf16r(a, S2, S2)
    a(f"v_rcp_f32 v{S2}, v{S2}")
    a(f"v_lshlrev_b32 v{T}, 2, v{LANE}")
    a(f"v_add_u32 v{T}, s3, v{T}")
    a(f"v_cmp_lt_u32 vcc, 31, v{LANE}")
    a(f"v_lshrrev_b32 v{E+1}, 4, v{LANE}")
    a(f"s_lshl_b32 s3, s43, 7")
    a(f"s_add_u32 s3, s3, {SCR}")
    a(f"v_cndmask_b32 v{S1+1}, v{S1}, v{S2}, vcc")
    a(f"v_lshlrev_b32 v{E+1}, 4, v{E+1}")
    a(f"v_bfe_u32 v{E+2}, v{LANE}, 3, 1")
    a(f"v_lshl_add_u32 v{E+1}, v{E+2}, 6, v{E+1}")
    a(f"v_add_u32 v{E+1}, s3, v{E+1}")
    a(f"ds_write_b32 v{T}, v{S1+1}")
    a(f"s_mov_b32 s40, 0x01010101")
    a(f"s_mov_b32 s41, 0x01010101")
    a(f"s_mov_b64 exec, s[40:41]")
    a(f"ds_write_b128 v{E+1}, {vr(CSA,4)}")
    a(f"s_mov_b64 exec, -1")
    srd(a, 24, 58, 59, WS_USED)
    a("s_waitcnt lgkmcnt(0)")
    a("s_barrier")
    st()
    QREG = 96
    XS = [XF, XF2]; WS2 = [WF, WQ]
    def qread(c, s_):
        b = c & 1
        a(f"ds_read_b128 {vr(XS[b]+4*s_,4)}, v{XA+s_} offset:{(c&3)*4096}")
        trq(WS2[b]+4*s_, 4*c+s_, 0); trq(WS2[b]+4*s_, 4*c+s_, 1)
    for s_ in range(4): qread(4, s_)
    for c in range(4, 8):
        b = c & 1
        for s_ in range(4):
            a(f"s_waitcnt lgkmcnt({9 if c < 7 else 9-3*s_})")
            a(f"v_mfma_f32_32x32x16_bf16 {vr(QACC,16)}, {vr(WS2[b]+4*s_,4)}, {vr(XS[b]+4*s_,4)}, {vr(QACC,16)}")
            if c < 7:
                qread(c+1, s_)
    CQ = XF
    a(f"v_lshrrev_b32 v{E+1}, 5, v{LANE}")
    a(f"v_lshlrev_b32 v{E+1}, 4, v{E+1}")
    for g in range(4):
        a(f"ds_read_b128 {vr(CQ+4*g,4)}, v{E+1} offset:{SCR+32*g}")
    a(f"v_mul_f32 v{S2}, {hex(f32bits(QSCALE))}, v{S2}")
    a(f"v_lshlrev_b32 v{T}, 4, v{LANE}")
    a(f"s_lshl_b32 s3, s43, 10")
    a(f"s_add_u32 s3, s3, {QX}")
    a(f"v_add_u32 v{T}, s3, v{T}")
    a("s_nop 4")
    a("s_waitcnt lgkmcnt(0)")
    for r in range(16):
        a(f"v_fma_f32 v{QACC+r}, -v{S1}, v{CQ+r}, v{QACC+r}")
    for r in range(16):
        a(f"v_mul_f32 v{QACC+r}, v{S2}, v{QACC+r}")
    for i in range(4):
        a(f"v_cvt_pk_bf16_f32 v{CQ+i}, v{QACC+2*i}, v{QACC+2*i+1}")
    a(f"ds_write_b128 v{T}, {vr(CQ,4)}")
    for i in range(4):
        a(f"v_cvt_pk_bf16_f32 v{QREG+i}, v{QACC+8+2*i}, v{QACC+8+2*i+1}")
    a("s_waitcnt lgkmcnt(0)")
    a("s_barrier")
    st()
    a(f"s_branch {name}_attn")
    a.label(f"{name}_compute")
    XF = 24; WF = 32; ACC = 56
    orient = [0, 0, 1]
    a(f"v_add_u32 v{WA+1}, 49152, v{WA}")
    for r in range(ACC, ACC+48):
        a(f"v_mov_b32 v{r}, 0")
    a("s_waitcnt lgkmcnt(0)")
    srd(a, 24, 58, 59, WS_USED)
    a(f"""
s_cmp_ge_u32 s2, 9
s_cbranch_scc1 {name}_nz
v_lshlrev_b32 v{T}, 4, v0
s_lshl_b32 s3, s2, 12
s_mov_b32 s33, {FL3-6*4096}
s_cmp_lt_u32 s2, 6
s_cselect_b32 s33, {ST}, s33
s_add_u32 s3, s3, s33
buffer_store_dwordx4 v[{ACC}:{ACC+3}], v{T}, s[24:27], s3 offen
""")
    a.label(f"{name}_nz")
    def reads(ks):
        c, s = ks >> 2, ks & 3
        bf = ks & 1
        out = [f"ds_read_b128 {vr(XF+4*bf,4)}, v{XA+s} offset:{(c&3)*4096}"]
        for b in (1, 2):
            for v in range(2):
                off = (16*ks + 4*v)*192 + 64*b
                base = WA
                if off >= 49152:
                    off -= 49152; base = WA+1
                out.append(f"ds_read_b64_tr_b16 {vr(WF+12*bf+4*b+2*v,2)}, v{base} offset:{off}")
        return out
    st.reset(3)
    for c in range(8):
        a("s_barrier")
        if c in (0, 4, 7): st()
        for r in reads(4*c): a(r)
        for s in range(4):
            ks = 4*c + s
            bf = ks & 1
            nx = reads(ks+1) if s < 3 else []
            xf = XF + 4*bf
            groups = {1: nx[0:3], 2: nx[3:5]}
            issued_next = 0
            for b in (1, 2):
                a(f"s_waitcnt lgkmcnt({(2-b)*2 + issued_next})")
                wf = WF + 12*bf + 4*b
                acc = vr(ACC+16*b, 16)
                if orient[b] == 0:
                    a(f"v_mfma_f32_32x32x16_bf16 {acc}, {vr(wf,4)}, {vr(xf,4)}, {acc}")
                else:
                    a(f"v_mfma_f32_32x32x16_bf16 {acc}, {vr(xf,4)}, {vr(wf,4)}, {acc}")
                for r in groups[b]: a(r)
                issued_next += len(groups[b])
    R31, HALF, A1, A2, MBV, RSV, VO, DV = E, E+1, E+2, E+3, E+4, E+5, E+6, E+7
    a(f"v_and_b32 v{R31}, 31, v{LANE}")
    a(f"v_lshrrev_b32 v{HALF}, 5, v{LANE}")
    a(f"v_lshlrev_b32 v{A1}, 4, v{HALF}")
    a(f"v_add_u32 v{A1}, {SCR}, v{A1}")
    a(f"v_lshlrev_b32 v{A2}, 2, v{R31}")
    a(f"v_add_u32 v{A2}, {SCR}, v{A2}")
    a(f"s_lshl_b32 s3, s43, 8")
    a(f"v_add_u32 v{T}, s3, v{A2}")
    a(f"v_add_u32 v{T+1}, s3, v{A1}")
    a(f"s_lshl_b32 s3, s43, 11")
    a(f"v_bfe_u32 v{VO}, v{LANE}, 4, 1")
    a(f"v_lshlrev_b32 v{VO}, 13, v{VO}")
    a(f"v_lshl_add_u32 v{VO}, v{HALF}, 8, v{VO}")
    a(f"v_and_b32 v{DV}, 15, v{LANE}")
    a(f"v_lshl_add_u32 v{VO}, v{DV}, 4, v{VO}")
    a(f"v_add_u32 v{VO}, s3, v{VO}")
    a(f"v_lshlrev_b32 v{DV}, 4, v{LANE}")
    a(f"v_add_u32 v{DV}, s3, v{DV}")
    a(f"s_lshl_b32 s46, s21, 14")
    a(f"s_add_u32 s46, s46, s47")
    a(f"s_add_u32 s48, s46, 8192")
    a("s_barrier")
    st()
    CS0 = 8
    TM, TR = E + 8, E + 24
    a(f"ds_read_b32 v{MBV}, v{T} offset:512")
    a(f"ds_read_b32 v{RSV}, v{T} offset:640")
    for g in range(4):
        a(f"ds_read_b128 {vr(CS0+16+4*g,4)}, v{A1} offset:{128+32*g}")
    a(f"ds_read_b32 v{CS0+32}, v{A2} offset:256")
    for g in range(4):
        a(f"ds_read_b128 {vr(TM+4*g,4)}, v{T+1} offset:{512+32*g}")
        a(f"ds_read_b128 {vr(TR+4*g,4)}, v{T+1} offset:{640+32*g}")
    a(f"s_lshl_b32 s37, s22, 8")
    a(f"s_lshl_b32 s3, s23, 2")
    a(f"s_add_u32 s37, s37, s3")
    a(f"s_add_u32 s37, s37, {FL1}")
    acc = ACC + 16; R = CS0 + 16
    a("s_waitcnt lgkmcnt(9)")
    for r in range(16):
        a(f"v_fma_f32 v{acc+r}, -v{MBV}, v{R+r}, v{acc+r}")
    for r in range(16):
        a(f"v_mul_f32 v{acc+r}, v{RSV}, v{acc+r}")
    for i in range(8):
        a(f"v_cvt_pk_bf16_f32 v{acc+i}, v{acc+2*i}, v{acc+2*i+1}")
    a(f"buffer_store_dwordx4 {vr(acc,4)}, v{DV}, s[24:27], s46 offen{KVSC}")
    a(f"buffer_store_dwordx4 {vr(acc+4,4)}, v{DV}, s[24:27], s48 offen{KVSC}")
    a("s_waitcnt lgkmcnt(0)")
    accv = ACC + 32; R = CS0 + 32
    for r in range(16):
        a(f"v_fma_f32 v{accv+r}, -v{TM+r}, v{R}, v{accv+r}")
    for r in range(16):
        a(f"v_mul_f32 v{accv+r}, v{TR+r}, v{accv+r}")
    for i in range(8):
        a(f"v_cvt_pk_bf16_f32 v{accv+i}, v{accv+2*i}, v{accv+2*i+1}")
    a(f"buffer_store_dwordx4 {vr(accv,4)}, v{VO}, s[24:27], s46 offen offset:1024{KVSC}")
    a(f"buffer_store_dwordx4 {vr(accv+4,4)}, v{VO}, s[24:27], s46 offen offset:1536{KVSC}")
    a(f"ds_write_b128 v{DV}, {vr(acc,4)} offset:{SB0}")
    a(f"ds_write_b128 v{DV}, {vr(acc+4,4)} offset:{SB0+8192}")
    a(f"ds_write_b128 v{VO}, {vr(accv,4)} offset:{SB0+1024}")
    a(f"ds_write_b128 v{VO}, {vr(accv+4,4)} offset:{SB0+1536}")
    a(f"v_lshlrev_b32 v{T}, 4, v{LANE}")
    a(f"s_lshl_b32 s3, s43, 10")
    a(f"s_add_u32 s3, s3, {QX}")
    a(f"v_add_u32 v{T}, s3, v{T}")
    a(f"v_mov_b32 v{A1}, 0")
    a(f"v_mov_b32 v{A2}, 1")
    a("s_waitcnt vmcnt(0)")
    a("s_mov_b64 exec, 1")
    a(f"buffer_store_dword v{A2}, v{A1}, s[24:27], s37 offen{KVSC}")
    a("s_mov_b64 exec, -1")
    a("s_waitcnt lgkmcnt(0)")
    a("s_barrier")
    st()
    a(f"ds_read_b128 {vr(QREG,4)}, v{T}")
    a.label(f"{name}_attn")
    SA = 0; SB = 16; O = 32; C = 48; EX = 64; P = 80; KF = 88; Q = QREG; V0 = 100; V1 = 108
    LN2 = 116; KA = 117; VA = 118; TT = 119; T2 = 120; LK = 121; LV = 122; KN = 123; RD = 124; RA = 125; DA = 126; ONE = 127
    S = [SA, SB]
    a(f"v_mov_b32 v{LN2}, v{LANE}")
    a(f"s_lshr_b32 s34, s20, 2")
    a(f"s_lshl_b32 s35, s34, 13")
    a(f"v_lshlrev_b32 v{LK}, 4, v{LN2}")
    a(f"v_add_u32 v{LK}, s35, v{LK}")
    a(f"v_lshrrev_b32 v{TT}, 5, v{LN2}")
    a(f"v_and_b32 v{T2}, 15, v{LN2}")
    a(f"v_lshlrev_b32 v{T2}, 4, v{T2}")
    a(f"v_lshl_add_u32 v{LV}, v{TT}, 8, v{T2}")
    a(f"v_add_u32 v{LV}, s35, v{LV}")
    a(f"v_add_u32 v{KA}, {SB0}, v{LK}")
    a(f"v_add_u32 v{VA}, {SB0}, v{LV}")
    a(f"ds_read_b128 {vr(KF,4)}, v{KA}")
    a(f"v_and_b32 v{TT}, 27, v{LN2}")
    a(f"v_cmp_eq_u32 vcc, 16, v{TT}")
    a(f"v_mov_b32 v{T2}, 0x3f803f80")
    a(f"v_mov_b32 v{ONE}, 1")
    a(f"v_mov_b32 v{RA}, {RDY+4}")
    a(f"s_lshl_b32 s3, s20, 2")
    a(f"s_add_u32 s3, s3, {DONE}")
    a(f"v_mov_b32 v{DA}, s3")
    for r in range(V0, V0+16):
        a(f"v_cndmask_b32 v{r}, 0, v{T2}, vcc")
    a(f"s_mov_b32 s40, 0x0000ffff")
    a(f"s_mov_b32 s41, 0x0000ffff")
    a("s_waitcnt lgkmcnt(0)")
    a(f"v_mfma_f32_32x32x16_bf16 {vr(SA,16)}, {vr(KF,4)}, {vr(Q,4)}, 0")
    for r in range(16):
        a(f"v_mov_b32 v{O+r}, 0")
    for r in range(4):
        a(f"v_mov_b32 v{P+4+r}, 0")
    def max16(dst, src, init=None):
        if init is None:
            a(f"v_max3_f32 v{dst}, v{src}, v{src+1}, v{src+2}")
            a(f"v_max_f32 v{dst}, v{dst}, v{src+3}")
            s0 = 4
        else:
            s0 = 0
        for i in range(s0, 16, 2):
            a(f"v_max3_f32 v{dst}, v{dst}, v{src+i}, v{src+i+1}")
    def setC():
        a(f"v_mov_b32 v{T2}, v{TT}")
        a("s_nop 1")
        a(f"v_permlane32_swap_b32 v{TT}, v{T2}")
        a("s_nop 1")
        a(f"v_max_f32 v{TT}, v{TT}, v{T2}")
        for r in range(16):
            a(f"v_sub_f32 v{C+r}, 0, v{TT}")
    max16(TT, SA)
    setC()
    for r in range(16):
        a(f"v_add_f32 v{SA+r}, v{SA+r}, v{C}")
    a("s_mov_b32 s31, 0")
    a(f"s_mov_b32 s36, {SB0+16384}")
    a(f"v_add_u32 v{KN}, s36, v{LK}")
    a("s_setprio 3")
    if STAMPS:
        a("s_waitcnt lgkmcnt(0)")
        a("s_mov_b32 s90, s64")
    st()
    a.raw(".p2align 6")
    a.label(f"{name}_loop")
    for t in range(4):
        cur = t & 1; nxt = cur ^ 1
        s0 = S[cur]; s1 = S[nxt]
        ex = lambda i: a(f"v_exp_f32 v{EX+i}, v{s0+i}")
        pk = lambda j: a(f"v_cvt_pk_bf16_f32 v{P+j}, v{EX+2*j}, v{EX+2*j+1}")
        if t == 3:
            a(f"v_cmp_ne_u32 vcc, 0, v{RD}")
            a(f"s_cbranch_vccz {name}_wait")
            a.label(f"{name}_ready")
            a(f"ds_read_b128 {vr(KF+4*nxt,4)}, v{KN}")
        else:
            a(f"ds_read_b128 {vr(KF+4*nxt,4)}, v{KA} offset:{(t+1)*2048}")
        a("s_mov_b64 exec, s[40:41]")
        a(f"ds_read_b128 {vr(V0+4*cur,4)}, v{VA} offset:{t*2048+1024}")
        a(f"ds_read_b128 {vr(V1+4*cur,4)}, v{VA} offset:{t*2048+1536}")
        a("s_mov_b64 exec, -1")
        if t == 2:
            a(f"ds_read_b32 v{RD}, v{RA}")
        for i in range(0, 3): ex(i)
        a(f"v_mfma_f32_32x32x16_bf16 {vr(O,16)}, {vr(V1+4*nxt,4)}, {vr(P+4,4)}, {vr(O,16)}")
        for i in range(3, 9): ex(i)
        a("s_waitcnt lgkmcnt(0)")
        a(f"v_mfma_f32_32x32x16_bf16 {vr(s1,16)}, {vr(KF+4*nxt,4)}, {vr(Q,4)}, {vr(C,16)}")
        if t == 3:
            a(f"ds_write_b32 v{DA}, v{ONE}")
        for j in range(4): pk(j)
        for i in range(9, 11): ex(i)
        a(f"v_mfma_f32_32x32x16_bf16 {vr(O,16)}, {vr(V0+4*cur,4)}, {vr(P,4)}, {vr(O,16)}")
        for i in range(11, 16): ex(i)
        for j in range(4, 8): pk(j)
    a(f"v_mov_b32 v{KA}, v{KN}")
    a(f"v_add_u32 v{VA}, s36, v{LV}")
    a(f"s_add_u32 s36, s36, 16384")
    a(f"s_cmp_eq_u32 s36, {SB0+NBUF*16384}")
    a(f"s_cselect_b32 s36, {SB0}, s36")
    a(f"v_add_u32 v{KN}, s36, v{LK}")
    a(f"v_add_u32 v{RA}, 4, v{RA}")
    a(f"v_add_u32 v{DA}, 32, v{DA}")
    a(f"s_add_u32 s31, s31, 1")
    a(f"s_and_b32 s3, s31, 3")
    a(f"s_cmp_lg_u32 s3, 0")
    a(f"s_cbranch_scc1 {name}_loop")
    a(f"s_cmp_eq_u32 s31, 4")
    a(f"s_cbranch_scc0 {name}_p8")
    a("s_setprio 2")
    st()
    a(f"s_branch {name}_loop")
    a.label(f"{name}_p8")
    a(f"s_cmp_eq_u32 s31, 8")
    a(f"s_cbranch_scc0 {name}_p12")
    a("s_setprio 1")
    st()
    a(f"s_branch {name}_loop")
    a.label(f"{name}_p12")
    a("s_setprio 0")
    a(f"s_cmp_lg_u32 s31, 16")
    a(f"s_cbranch_scc1 {name}_loop")
    st()
    a(f"v_mfma_f32_32x32x16_bf16 {vr(O,16)}, {vr(V1+4,4)}, {vr(P+4,4)}, {vr(O,16)}")
    a(f"v_lshlrev_b32 v{KA}, 4, v{LN2}")
    a(f"s_lshl_b32 s28, s23, 5")
    a(f"s_lshl_b32 s3, s22, 1")
    a(f"s_add_u32 s28, s28, s3")
    a(f"s_add_u32 s28, s28, s34")
    a(f"s_lshl_b32 s28, s28, 10")
    a(f"s_add_u32 s28, s28, {OF}")
    a(f"v_mov_b32 v{TT}, 0x4f800000")
    a("s_nop 7")
    a(f"v_cmp_le_f32 vcc, v{O+8}, v{TT}")
    a(f"s_cmp_eq_u64 vcc, exec")
    a(f"s_cbranch_scc0 {name}_fallback")
    a.label(f"{name}_fin")
    a(f"v_rcp_f32 v{TT}, v{O+8}")
    a("s_nop 0")
    for r in range(8):
        a(f"v_mul_f32 v{O+r}, v{TT}, v{O+r}")
    for i in range(4):
        a(f"v_cvt_pk_bf16_f32 v{O+i}, v{O+2*i}, v{O+2*i+1}")
    a(f"buffer_store_dwordx4 {vr(O,4)}, v{KA}, s[24:27], s28 offen")
    st()
    st.flush(58, 59, 20, 64)
    a("s_endpgm")
    a.label(f"{name}_wait")
    if STAMPS:
        a("s_memtime s[60:61]")
    a(f"s_mov_b32 s38, {SPIN_MAX}")
    a.label(f"{name}_wait2")
    a("s_sleep 1")
    a(f"ds_read_b32 v{RD}, v{RA}")
    a("s_waitcnt lgkmcnt(0)")
    a(f"v_cmp_ne_u32 vcc, 0, v{RD}")
    if STAMPS:
        a(f"s_cbranch_vccz {name}_wait3")
        a("s_memtime s[62:63]")
        a("s_waitcnt lgkmcnt(0)")
        a("s_sub_u32 s62, s62, s60")
        a("s_add_u32 s90, s90, s62")
        a(f"s_branch {name}_ready")
        a.label(f"{name}_wait3")
    a(f"s_cbranch_vccnz {name}_ready")
    a(f"s_sub_u32 s38, s38, 1")
    a(f"s_cmp_lg_u32 s38, 0")
    a(f"s_cbranch_scc1 {name}_wait2")
    a(f"s_branch {name}_ready")
    a.label(f"{name}_fallback")
    a(f"v_mov_b32 v{TT}, 0xff800000")
    a(f"s_mov_b32 s31, 0")
    def tile_off():
        a(f"s_lshr_b32 s33, s31, 2")
        a(f"s_lshl_b32 s33, s33, 14")
        a(f"s_and_b32 s3, s31, 3")
        a(f"s_lshl_b32 s3, s3, 11")
        a(f"s_add_u32 s33, s33, s3")
        a(f"s_add_u32 s33, s33, s47")
    a.label(f"{name}_mx")
    tile_off()
    a(f"buffer_load_dwordx4 {vr(KF,4)}, v{LK}, s[24:27], s33 offen sc1")
    a("s_waitcnt vmcnt(0)")
    a(f"v_mfma_f32_32x32x16_bf16 {vr(SA,16)}, {vr(KF,4)}, {vr(Q,4)}, 0")
    a("s_nop 15")
    max16(TT, SA, init=True)
    a(f"s_add_u32 s31, s31, 1")
    a(f"s_cmp_lt_u32 s31, 64")
    a(f"s_cbranch_scc1 {name}_mx")
    setC()
    for r in range(16):
        a(f"v_mov_b32 v{O+r}, 0")
    a(f"s_mov_b32 s31, 0")
    a.label(f"{name}_fb2")
    tile_off()
    a(f"buffer_load_dwordx4 {vr(KF,4)}, v{LK}, s[24:27], s33 offen sc1")
    a("s_mov_b64 exec, s[40:41]")
    a(f"buffer_load_dwordx4 {vr(V0,4)}, v{LV}, s[24:27], s33 offen offset:1024 sc1")
    a(f"buffer_load_dwordx4 {vr(V1,4)}, v{LV}, s[24:27], s33 offen offset:1536 sc1")
    a("s_mov_b64 exec, -1")
    a("s_waitcnt vmcnt(0)")
    a(f"v_mfma_f32_32x32x16_bf16 {vr(SA,16)}, {vr(KF,4)}, {vr(Q,4)}, {vr(C,16)}")
    a("s_nop 15")
    for i in range(16):
        a(f"v_exp_f32 v{EX+i}, v{SA+i}")
    a("s_nop 0")
    for j in range(8):
        a(f"v_cvt_pk_bf16_f32 v{P+j}, v{EX+2*j}, v{EX+2*j+1}")
    a("s_nop 1")
    a(f"v_mfma_f32_32x32x16_bf16 {vr(O,16)}, {vr(V0,4)}, {vr(P,4)}, {vr(O,16)}")
    a(f"v_mfma_f32_32x32x16_bf16 {vr(O,16)}, {vr(V1,4)}, {vr(P+4,4)}, {vr(O,16)}")
    a(f"s_add_u32 s31, s31, 1")
    a(f"s_cmp_lt_u32 s31, 64")
    a(f"s_cbranch_scc1 {name}_fb2")
    a("s_nop 15")
    a(f"s_branch {name}_fin")
    a.label(f"{name}_stream")
    FV = 4; Z = 5; DVs = 6; FA = 7; DN = 8; RW = 10; RV = 11
    a(f"v_lshlrev_b32 v{FA}, 2, v{LANE}")
    a(f"v_lshlrev_b32 v{DVs}, 4, v{LANE}")
    a(f"v_mov_b32 v{Z}, 0")
    a(f"s_lshl_b32 s37, s22, 8")
    a(f"s_add_u32 s37, s37, {FL1}")
    a(f"s_lshl_b32 s39, s22, 2")
    a("s_waitcnt lgkmcnt(0)")
    srd(a, 24, 58, 59, WS_USED)
    srd(a, 28, 56, 57, 256)
    a(f"s_cmp_lg_u32 s21, 0")
    a(f"s_cbranch_scc1 {name}_noinit")
    a(f"buffer_store_dword v{Z}, v{FA}, s[24:27], s37 offen sc1")
    a(f"v_mov_b32 v{FV}, 1")
    a("s_waitcnt vmcnt(0)")
    a("s_mov_b64 exec, 1")
    a(f"buffer_store_dword v{FV}, v{Z}, s[28:31], s39 offen sc1")
    a("s_mov_b64 exec, -1")
    a.label(f"{name}_noinit")
    a("s_getpc_b64 s[52:53]")
    a.label(f"{name}_pc")
    a(f"s_sub_u32 s52, s52, {name}_pc-text_start")
    a(f"s_subb_u32 s53, s53, 0")
    a(f"v_lshlrev_b32 v{RW}, 7, v{LANE}")
    a(f"s_mov_b32 s54, text_end-text_start-4")
    for k in range(NPF):
        a(f"v_add_u32 v{RV}, {k*8192}, v{RW}")
        a(f"v_min_u32 v{RV}, s54, v{RV}")
        a(f"global_load_dword v{12+k}, v{RV}, s[52:53]")
    for c in range(7):
        a("s_barrier")
    a(f"s_mov_b32 s38, {SPIN_MAX}")
    a.label(f"{name}_initw")
    a(f"buffer_load_dword v{FV}, v{Z}, s[28:31], s39 offen sc1")
    a("s_waitcnt vmcnt(0)")
    a(f"v_cmp_ne_u32 vcc, 0, v{FV}")
    a(f"s_cbranch_vccnz {name}_initok")
    a("s_sleep 2")
    a(f"s_sub_u32 s38, s38, 1")
    a(f"s_cmp_lg_u32 s38, 0")
    a(f"s_cbranch_scc1 {name}_initw")
    a.label(f"{name}_initok")
    a("s_barrier")
    a("s_barrier")
    a(f"v_add_u32 v{RW}, {RDY}, v{FA}")
    a(f"v_cmp_eq_u32 vcc, 16, v{LANE}")
    a(f"v_add_u32 v{DN}, {DONE}, v{FA}")
    a("s_nop 1")
    a(f"v_cndmask_b32 v{RV}, 0, 1, vcc")
    a(f"ds_write_b32 v{DN}, v{Z}")
    a(f"ds_write_b32 v{DN}, v{Z} offset:256")
    a(f"s_mov_b32 exec_hi, 0")
    a(f"ds_write_b32 v{RW}, v{RV}")
    a("s_mov_b64 exec, -1")
    a("s_waitcnt lgkmcnt(0)")
    a("s_barrier")
    st.reset(1)
    st()
    a("s_mov_b32 s31, 1")
    a(f"s_mov_b32 s36, {SB0+16384}")
    a(f"s_mov_b32 s38, {SPIN_MAX}")
    a.label(f"{name}_round")
    a(f"buffer_load_dword v{FV}, v{FA}, s[24:27], s37 offen sc1")
    a(f"ds_read_b32 v{DN+1}, v{DN}")
    a("s_waitcnt vmcnt(0) lgkmcnt(0)")
    a(f"v_cmp_gt_u32 vcc, s31, v{LANE}")
    a(f"v_cmp_ne_u32 s[48:49], 0, v{FV}")
    a(f"v_cmp_ne_u32 s[50:51], 0, v{DN+1}")
    a(f"v_mov_b32 v{RV}, 1")
    a("s_mov_b64 exec, vcc")
    a(f"ds_write_b32 v{RW}, v{RV}")
    a("s_mov_b64 exec, -1")
    a(f"s_cmp_ge_u32 s31, 16")
    a(f"s_cbranch_scc1 {name}_sdone")
    a("s_mov_b32 s44, 0")
    a.label(f"{name}_try")
    a(f"s_add_u32 s3, s21, s31")
    a(f"s_and_b32 s45, s3, 15")
    a(f"s_lshl_b32 s3, s45, 2")
    a(f"s_lshr_b64 s[52:53], s[48:49], s3")
    a(f"s_and_b32 s52, s52, 15")
    a(f"s_cmp_lg_u32 s52, 15")
    a(f"s_cbranch_scc1 {name}_rend")
    a(f"s_cmp_lt_u32 s31, {NBUF}")
    a(f"s_cbranch_scc1 {name}_free")
    a(f"s_sub_u32 s3, s31, {NBUF}")
    a(f"s_lshl_b32 s3, s3, 3")
    a(f"s_lshr_b64 s[52:53], s[50:51], s3")
    a(f"s_and_b32 s52, s52, 0xff")
    a(f"s_cmp_lg_u32 s52, 0xff")
    a(f"s_cbranch_scc1 {name}_rend")
    a.label(f"{name}_free")
    a(f"s_lshl_b32 s33, s45, 14")
    a(f"s_add_u32 s33, s33, s47")
    a(f"s_mov_b32 m0, s36")
    for i in range(16):
        if i % 4 == 0 and i:
            a(f"s_add_u32 m0, m0, 4096")
            a(f"s_add_u32 s33, s33, 4096")
        elif i == 0:
            a("s_nop 0")
        a(f"buffer_load_dwordx4 v{DVs}, s[24:27], s33 offen offset:{(i%4)*1024} sc1 lds")
    a(f"s_add_u32 s36, s36, 16384")
    a(f"s_cmp_eq_u32 s36, {SB0+NBUF*16384}")
    a(f"s_cselect_b32 s36, {SB0}, s36")
    a(f"s_add_u32 s31, s31, 1")
    a(f"s_add_u32 s44, s44, 1")
    a(f"s_cmp_ge_u32 s31, 16")
    a(f"s_cbranch_scc1 {name}_round")
    a(f"s_cmp_lt_u32 s44, 3")
    a(f"s_cbranch_scc1 {name}_try")
    a(f"s_branch {name}_round")
    a.label(f"{name}_rend")
    a(f"s_cmp_lg_u32 s44, 0")
    a(f"s_cbranch_scc1 {name}_round")
    a("s_sleep 4")
    a(f"s_sub_u32 s38, s38, 1")
    a(f"s_cmp_lg_u32 s38, 0")
    a(f"s_cbranch_scc1 {name}_round")
    a(f"v_mov_b32 v{RV}, 1")
    a(f"s_mov_b32 exec_hi, 0")
    a(f"ds_write_b32 v{RW}, v{RV}")
    a.label(f"{name}_sdone")
    st()
    st.flush(58, 59, 20, 64)
    a.label(f"{name}_end")
    a("s_endpgm")
    return 144
```

```python
from asmlib import *
from layout import *
from k1 import f32bits, bf16r
from k4 import wave_red, SORT8

SPIN = 200000
NFFN = 43
BIT8 = [(0,4),(1,5),(2,6),(3,7),(0,2),(1,3),(4,6),(5,7),(0,1),(2,3),(4,5),(6,7)]

def poll(a, name, tag, load_lines, cond_lines, cnt="s38", sleep=1):
    a(f"s_mov_b32 {cnt}, {SPIN}")
    a.label(f"{name}_{tag}")
    for l in load_lines: a(l)
    a("s_waitcnt vmcnt(0)")
    for l in cond_lines: a(l)
    a(f"s_cbranch_scc1 {name}_{tag}_ok")
    a(f"s_sleep {sleep}")
    a(f"s_sub_u32 {cnt}, {cnt}, 1")
    a(f"s_cmp_lg_u32 {cnt}, 0")
    a(f"s_cbranch_scc1 {name}_{tag}")
    a.label(f"{name}_{tag}_ok")

def stats_to_mb_rs(a, S1, S2):
    inv = hex(f32bits(1/512))
    a(f"v_mul_f32 v{S1}, {inv}, v{S1}")
    a(f"v_mul_f32 v{S2}, {inv}, v{S2}")
    a(f"v_fma_f32 v{S2}, -v{S1}, v{S1}, v{S2}")
    a(f"v_max_f32 v{S2}, 0, v{S2}")
    bf16r(a, S1, S1)
    bf16r(a, S2, S2)
    a(f"v_add_f32 v{S2}, {hex(f32bits(1e-5))}, v{S2}")
    bf16r(a, S2, S2)
    a(f"v_sqrt_f32 v{S2}, v{S2}")
    a("s_nop 0")
    bf16r(a, S2, S2)
    a(f"v_rcp_f32 v{S2}, v{S2}")
    a("s_nop 0")

def norm_pair(a, dst, src, mb, rs, t0, t1):
    a(f"v_lshlrev_b32 v{t0}, 16, v{src}")
    a(f"v_and_b32 v{t1}, s44, v{src}")
    a(f"v_subrev_f32 v{t0}, {mb}, v{t0}")
    a(f"v_subrev_f32 v{t1}, {mb}, v{t1}")
    a(f"v_cvt_pk_bf16_f32 v{dst}, v{t0}, v{t1}")
    a(f"v_lshlrev_b32 v{t0}, 16, v{dst}")
    a(f"v_and_b32 v{t1}, s44, v{dst}")
    a(f"v_mul_f32 v{t0}, {rs}, v{t0}")
    a(f"v_mul_f32 v{t1}, {rs}, v{t1}")
    a(f"v_cvt_pk_bf16_f32 v{dst}, v{t0}, v{t1}")

def add_pair(a, dst, x, y, t0, t1, t2, t3):
    a(f"v_lshlrev_b32 v{t0}, 16, v{x}")
    a(f"v_and_b32 v{t1}, s44, v{x}")
    a(f"v_lshlrev_b32 v{t2}, 16, v{y}")
    a(f"v_and_b32 v{t3}, s44, v{y}")
    a(f"v_add_f32 v{t0}, v{t0}, v{t2}")
    a(f"v_add_f32 v{t1}, v{t1}, v{t3}")
    a(f"v_cvt_pk_bf16_f32 v{dst}, v{t0}, v{t1}")

def gen_tail(a, name="tail_kernel"):
    kernel_begin(a, name)
    LANE = 1; DV = 2; WV = 3; OA = 4; WA = 5; T = 6; T2 = 7; HALF = 8; R31 = 9; XO = 10; ONES = 11
    XR = 12; WR = 20; OFr = 28; WFr = 36; ACC = 44; S1 = 60; S2 = 61; SW = 62; T3 = 63; HP = 64; HS = 72
    AF = 80; DAF = 144; T4 = 176; T5 = 177
    XS = 131072; CAND = XS + 8*1040 + 64; UX = CAND + 256; ACT = UX + 2048
    st = Stamper(a, 2)
    st.start()
    st()
    a(f"""
s_cmp_ge_u32 s2, 256
s_cbranch_scc1 {name}_end
s_load_dwordx2 s[4:5], s[0:1], 0
s_load_dwordx2 s[6:7], s[0:1], 16
s_load_dwordx2 s[10:11], s[0:1], 32
s_load_dwordx4 s[48:51], s[0:1], 40
s_load_dwordx4 s[52:55], s[0:1], 56
s_load_dwordx2 s[8:9], s[0:1], 80
v_lshrrev_b32 v{T}, 6, v0
v_and_b32 v{LANE}, 63, v0
s_and_b32 s3, s2, 7
v_readfirstlane_b32 s20, v{T}
s_lshr_b32 s33, s2, 3
s_lshl_b32 s21, s3, 2
s_and_b32 s3, s33, 3
s_add_u32 s21, s21, s3            ; mt (0..31)
s_lshr_b32 s22, s33, 2            ; nt (0..7)
s_and_b32 s43, s20, 3             ; w4
s_lshr_b32 s34, s43, 1            ; wr
s_and_b32 s35, s43, 1             ; wc
s_mov_b32 s44, 0xffff0000
v_lshlrev_b32 v{DV}, 4, v{LANE}
v_lshrrev_b32 v{HALF}, 5, v{LANE}
v_and_b32 v{R31}, 31, v{LANE}
s_cmp_lt_u32 s20, 4
s_cbranch_scc1 {name}_comp
""")
    a(f"""
v_lshrrev_b32 v{T}, 3, v{LANE}
v_lshlrev_b32 v{T}, 10, v{T}
v_bfe_u32 v{T2}, v{LANE}, 4, 1
v_lshlrev_b32 v{T2}, 2, v{T2}
v_and_b32 v{WV}, 7, v{LANE}
v_xor_b32 v{WV}, v{WV}, v{T2}
v_lshl_add_u32 v{WV}, v{WV}, 4, v{T}
s_lshl_b32 s40, s21, 16
s_add_u32 s40, s40, {OF}
s_lshl_b32 s41, s34, 15
s_lshl_b32 s3, s35, 12
s_add_u32 s41, s41, s3
s_add_u32 s40, s40, s41
s_lshl_b32 s42, s43, 12
s_add_u32 s42, s42, 65536
s_lshl_b32 s45, s43, 15
s_lshl_b32 s3, s22, 7
s_add_u32 s45, s45, s3
s_waitcnt lgkmcnt(0)
""")
    srd(a, 16, 6, 7, 524288)
    srd(a, 24, 8, 9, WS_USED)
    def dma(c):
        for i in range(4):
            a(f"s_add_u32 m0, s41, {c*8192 + i*1024}")
            a(f"s_add_u32 s33, s40, {c*8192 + i*1024}")
            a(f"buffer_load_dwordx4 v{DV}, s[24:27], s33 offen lds")
        for i in range(4):
            a(f"s_add_u32 m0, s42, {c*16384 + i*1024}")
            a(f"s_add_u32 s33, s45, {c*131072 + i*8192}")
            a(f"buffer_load_dwordx4 v{WV}, s[16:19], s33 offen lds")
    dma(0); dma(1)
    for c in range(4):
        a(f"s_waitcnt vmcnt({8 if c < 3 else 0})")
        a("s_barrier")
        if c + 2 < 4: dma(c+2)
    st()
    a(f"s_cmp_gt_u32 s2, {NFFN}")
    a(f"s_cbranch_scc1 {name}_end")
    ST1 = 8; ST2 = 16; STW = 24; WRV = 32; K = 40; KB = 48; WS_ = 56; TT = 57; TID = 58; FG = 60
    srd(a, 28, 10, 11, 1024)
    a(f"buffer_load_dwordx4 {vr(WRV,4)}, v{DV}, s[28:31], 0 offen")
    a(f"v_subrev_u32 v{TID}, 256, v0")
    a(f"v_mov_b32 v{TT}, 0x3f803f80")
    a(f"v_mov_b32 v{WS_}, 0")
    a(f"s_cmp_eq_u32 s2, {NFFN}")
    a(f"s_cbranch_scc1 {name}_rb4")
    a("s_barrier")
    a.label(f"{name}_rb4")
    a("s_waitcnt vmcnt(0)")
    for i in range(4):
        a(f"v_dot2_f32_bf16 v{WS_}, v{WRV+i}, v{TT}, v{WS_}")
    a("s_nop 2")
    wave_red(a, "v_add_f32", [WS_], [TT])
    a(f"v_lshlrev_b32 v{T}, 5, v{TID}")
    a(f"v_lshlrev_b32 v{T2}, 3, v{TID}")
    a(f"v_sub_u32 v{T2}, 2047, v{T2}")
    a(f"s_mov_b32 s45, 0xfffff800")
    a(f"s_mov_b32 s46, 0x80000000")
    a(f"s_lshl_b32 s36, s43, 10")
    a(f"s_add_u32 s36, s36, {FL3}")
    st()
    poll(a, name, "pf3", [f"buffer_load_dwordx4 {vr(FG,4)}, v{DV}, s[24:27], s36 offen sc1"],
         [f"v_and_b32 v{FG}, v{FG}, v{FG+1}", f"v_and_b32 v{FG+2}, v{FG+2}, v{FG+3}", f"v_and_b32 v{FG}, v{FG}, v{FG+2}",
          f"v_cmp_ne_u32 vcc, 0, v{FG}", "s_cmp_eq_u64 vcc, exec"])
    st()
    a(f"s_mov_b32 s33, {ST}")
    a(f"s_mov_b32 s39, {ST+8192}")
    a(f"s_mov_b32 s37, {ST+16384}")
    for base, so in ((ST1, 33), (ST2, 39), (STW, 37)):
        a(f"buffer_load_dwordx4 {vr(base,4)}, v{T}, s[24:27], s{so} offen sc1")
        a(f"buffer_load_dwordx4 {vr(base+4,4)}, v{T}, s[24:27], s{so} offen offset:16 sc1")
    a("s_waitcnt vmcnt(0)")
    st()
    inv = hex(f32bits(1/512))
    for i in range(8):
        a(f"v_mul_f32 v{ST1+i}, {inv}, v{ST1+i}")
        a(f"v_mul_f32 v{ST2+i}, {inv}, v{ST2+i}")
        a(f"v_fma_f32 v{ST2+i}, -v{ST1+i}, v{ST1+i}, v{ST2+i}")
        a(f"v_max_f32 v{ST2+i}, 0, v{ST2+i}")
        bf16r(a, ST2+i, ST2+i)
        a(f"v_add_f32 v{ST2+i}, {hex(f32bits(1e-5))}, v{ST2+i}")
        bf16r(a, ST2+i, ST2+i)
        a(f"v_sqrt_f32 v{ST2+i}, v{ST2+i}")
        a(f"v_fma_f32 v{STW+i}, -v{ST1+i}, v{WS_}, v{STW+i}")
        bf16r(a, ST2+i, ST2+i)
        a(f"v_rcp_f32 v{ST2+i}, v{ST2+i}")
        a(f"v_subrev_u32 v{T}, {i}, v{T2}")
        a(f"v_mul_f32 v{STW+i}, v{STW+i}, v{ST2+i}")
        a(f"v_ashrrev_i32 v{ST1+i}, 31, v{STW+i}")
        a(f"v_or_b32 v{ST1+i}, s46, v{ST1+i}")
        a(f"v_xor_b32 v{STW+i}, v{STW+i}, v{ST1+i}")
        a(f"v_and_or_b32 v{K+i}, v{STW+i}, s45, v{T}")
    st()
    cur = [K+i for i in range(8)]
    spare = [KB+i for i in range(8)]
    def ce(i, j):
        n = spare.pop()
        a(f"v_max_u32 v{n}, v{cur[i]}, v{cur[j]}")
        a(f"v_min_u32 v{cur[j]}, v{cur[i]}, v{cur[j]}")
        spare.append(cur[i]); cur[i] = n
    for (i, j) in SORT8: ce(i, j)
    def merge_dpp(dpp, clean=True):
        nonlocal cur, spare
        a("s_nop 1")
        new = list(spare)
        for i in range(8):
            a(f"v_max_u32_dpp v{new[i]}, v{cur[7-i]}, v{cur[i]} {dpp} row_mask:0xf bank_mask:0xf")
        spare = list(cur); cur = new
        if clean:
            for (i, j) in BIT8: ce(i, j)
    def merge_swap(sw, clean=True):
        nonlocal cur, spare
        cp = list(spare)
        for i in range(8):
            a(f"v_mov_b32 v{cp[i]}, v{cur[i]}")
        a("s_nop 0")
        for i in range(8):
            a(f"{sw} v{cur[i]}, v{cp[i]}")
        a("s_nop 0")
        for i in range(8):
            a(f"v_max_u32 v{cur[i]}, v{cur[i]}, v{cp[7-i]}")
        if clean:
            for (i, j) in BIT8: ce(i, j)
    for d in ("quad_perm:[1,0,3,2]", "quad_perm:[2,3,0,1]", "row_half_mirror", "row_mirror"):
        merge_dpp(d)
    merge_swap("v_permlane16_swap_b32")
    merge_swap("v_permlane32_swap_b32")
    st()
    LW = 8
    for i in range(8):
        a(f"v_mov_b32 v{LW+i}, v{cur[i]}")
    a(f"s_lshl_b32 s3, s43, 5")
    a(f"s_add_u32 s3, s3, {CAND}")
    a(f"v_mov_b32 v{T}, s3")
    a(f"ds_write_b128 v{T}, {vr(LW,4)}")
    a(f"ds_write_b128 v{T}, {vr(LW+4,4)} offset:16")
    a(f"v_and_b32 v{T}, 3, v{LANE}")
    a(f"v_lshlrev_b32 v{T}, 5, v{T}")
    a(f"v_add_u32 v{T}, {CAND}, v{T}")
    a(f"s_mov_b32 s38, {SPIN}")
    a.label(f"{name}_cw")
    a(f"ds_read_b128 {vr(K,4)}, v{T}")
    a(f"ds_read_b128 {vr(K+4,4)}, v{T} offset:16")
    a("s_waitcnt lgkmcnt(0)")
    a(f"v_min_u32 v{T2}, v{K+3}, v{K+7}")
    a(f"v_cmp_ne_u32 vcc, 0, v{T2}")
    a("s_cmp_eq_u64 vcc, exec")
    a(f"s_cbranch_scc1 {name}_cw_ok")
    a(f"s_sub_u32 s38, s38, 1")
    a(f"s_cmp_lg_u32 s38, 0")
    a(f"s_cbranch_scc1 {name}_cw")
    a.label(f"{name}_cw_ok")
    cur = [K+i for i in range(8)]; spare = [KB+i for i in range(8)]
    merge_dpp("quad_perm:[1,0,3,2]")
    merge_dpp("quad_perm:[2,3,0,1]")
    st()
    a("s_nop 0")
    for i in range(8):
        a(f"v_readfirstlane_b32 s{56+i}, v{cur[i]}")
    a("s_nop 3")
    for i in range(8):
        a(f"s_and_b32 s{56+i}, s{56+i}, 0x7ff")
        a(f"s_sub_u32 s{56+i}, 2047, s{56+i}")
    for e in range(2):
        a(f"s_mov_b32 s{46+e}, s{56+e}")
        for w in range(1, 4):
            a(f"s_cmp_eq_u32 s43, {w}")
            a(f"s_cselect_b32 s{46+e}, s{56+2*w+e}, s{46+e}")
    HR = 8; SM = 16; HN = 24
    a(f"v_mov_b32 v{T}, 0")
    for e in range(2):
        a(f"s_lshl_b32 s33, s{46+e}, 10")
        a(f"s_add_u32 s33, s33, {HB}")
        a(f"buffer_load_dwordx4 {vr(HR+4*e,4)}, v{DV}, s[24:27], s33 offen sc1")
        a(f"s_lshl_b32 s33, s{46+e}, 2")
        a(f"s_add_u32 s33, s33, {ST}")
        a(f"s_add_u32 s39, s33, 8192")
        a(f"buffer_load_dword v{SM+2*e}, v{T}, s[24:27], s33 offen sc1")
        a(f"buffer_load_dword v{SM+2*e+1}, v{T}, s[24:27], s39 offen sc1")
    a(f"s_cmp_lg_u32 s2, {NFFN}")
    a(f"s_cbranch_scc1 {name}_np1")
    a(f"s_cmp_lg_u32 s43, 0")
    a(f"s_cbranch_scc1 {name}_np1")
    for i in range(8):
        a(f"v_mov_b32 v{KB+i}, s{56+i}")
    a(f"s_mov_b32 s33, {SELF}")
    a("s_mov_b64 exec, 1")
    for i in range(8):
        a(f"v_add_u32 v{KB+i}, 1, v{KB+i}")
    a(f"buffer_store_dwordx4 {vr(KB,4)}, v{T}, s[24:27], s33 offen offset:64 sc1")
    a(f"buffer_store_dwordx4 {vr(KB+4,4)}, v{T}, s[24:27], s33 offen offset:80 sc1")
    a("s_mov_b64 exec, -1")
    a.label(f"{name}_np1")
    a(f"s_mul_i32 s3, s43, 2080")
    a(f"s_add_u32 s3, s3, {XS}")
    a(f"v_add_u32 v{TT}, s3, v{DV}")
    a("s_waitcnt vmcnt(0)")
    st()
    for e in range(2):
        stats_to_mb_rs(a, SM+2*e, SM+2*e+1)
    for e in range(2):
        for i in range(4):
            norm_pair(a, HN+4*e+i, HR+4*e+i, f"v{SM+2*e}", f"v{SM+2*e+1}", T, T2)
    a(f"s_cmp_eq_u32 s2, {NFFN}")
    a(f"s_cbranch_scc1 {name}_sig")
    a(f"ds_write_b128 v{TT}, {vr(HN,4)}")
    a(f"ds_write_b128 v{TT}, {vr(HN+4,4)} offset:1040")
    a("s_waitcnt lgkmcnt(0)")
    a("s_barrier")
    st()
    a(f"s_branch {name}_ldone")
    a.label(f"{name}_sig")
    for e in range(2):
        a(f"v_mov_b32 v{SM+e}, 0")
    for i in range(4):
        for e in range(2):
            a(f"v_dot2_f32_bf16 v{SM+e}, v{HN+4*e+i}, v{WRV+i}, v{SM+e}")
    a("s_nop 2")
    wave_red(a, "v_add_f32", [SM, SM+1], [SM+2, SM+3])
    for e in range(2):
        bf16r(a, SM+e, SM+e)
        a(f"v_mul_f32 v{SM+e}, {hex(f32bits(-1.4426950408889634))}, v{SM+e}")
        a(f"v_exp_f32 v{SM+e}, v{SM+e}")
        a("s_nop 0")
        a(f"v_add_f32 v{SM+e}, 1.0, v{SM+e}")
        a(f"v_rcp_f32 v{SM+e}, v{SM+e}")
        a("s_nop 0")
        bf16r(a, SM+e, SM+e)
        a(f"v_or_b32 v{SM+e}, 1, v{SM+e}")
    a(f"v_mov_b32 v{T}, 0")
    a(f"s_lshl_b32 s33, s43, 3")
    a(f"s_add_u32 s33, s33, {SELF+128}")
    a("s_mov_b64 exec, 1")
    a(f"buffer_store_dwordx2 {vr(SM,2)}, v{T}, s[24:27], s33 offen sc1")
    a.label(f"{name}_ldone")
    st.flush(8, 9, 20, 8)
    a("s_endpgm")
    a.label(f"{name}_comp")
    st.reset(1)
    a(f"""
v_lshlrev_b32 v{XO}, 10, v{R31}
v_lshl_add_u32 v{XO}, v{HALF}, 4, v{XO}
s_lshl_b32 s36, s21, 1
s_add_u32 s36, s36, s34           ; rb
s_lshl_b32 s37, s36, 15
s_lshl_b32 s47, s22, 1
s_add_u32 s47, s47, s35
s_lshl_b32 s39, s47, 6
s_add_u32 s37, s37, s39
v_lshlrev_b32 v{T}, 3, v{HALF}
s_waitcnt lgkmcnt(0)
""")
    srd(a, 12, 4, 5, 2097152)
    srd(a, 24, 8, 9, WS_USED)
    srd(a, 28, 10, 11, 1024)
    a(f"buffer_load_dwordx4 {vr(XR,4)}, v{XO}, s[12:15], s37 offen")
    a(f"buffer_load_dwordx4 {vr(XR+4,4)}, v{XO}, s[12:15], s37 offen offset:32")
    for g in range(4):
        a(f"buffer_load_dwordx2 {vr(WR+2*g,2)}, v{T}, s[28:31], s39 offen offset:{16*g}")
    a(f"s_lshl_b32 s3, s34, 15")
    a(f"v_add_u32 v{OA}, s3, v{DV}")
    a(f"v_bfe_u32 v{T}, v{LANE}, 2, 2")
    a(f"v_lshl_add_u32 v{T2}, v{HALF}, 2, v{T}")
    a(f"v_lshlrev_b32 v{WA}, 7, v{T2}")
    a(f"v_bfe_u32 v{T}, v{LANE}, 3, 1")
    a(f"v_lshlrev_b32 v{T}, 6, v{T}")
    a(f"s_lshl_b32 s3, s35, 6")
    a(f"v_xor_b32 v{T}, s3, v{T}")
    a(f"v_add_u32 v{WA}, v{WA}, v{T}")
    a(f"v_bfe_u32 v{T}, v{LANE}, 4, 1")
    a(f"v_lshl_add_u32 v{WA}, v{T}, 5, v{WA}")
    a(f"v_and_b32 v{T}, 3, v{LANE}")
    a(f"v_lshl_add_u32 v{WA}, v{T}, 3, v{WA}")
    a(f"v_add_u32 v{WA}, 65536, v{WA}")
    a(f"v_mov_b32 v{ONES}, 0x3f803f80")
    for r in range(16):
        a(f"v_mov_b32 v{ACC+r}, 0")
    a(f"v_lshlrev_b32 v{T}, 2, v{LANE}")
    a(f"v_add_u32 v{T}, {CAND}, v{T}")
    a(f"ds_write_b32 v{T}, v{ACC}")
    NB = 4
    FB = AF
    def reads(hh):
        bf = hh % NB
        a(f"ds_read_b128 {vr(FB+8*bf,4)}, v{OA} offset:{hh*1024}")
        a(f"ds_read_b64_tr_b16 {vr(FB+8*bf+4,2)}, v{WA} offset:{hh*2048}")
        a(f"ds_read_b64_tr_b16 {vr(FB+8*bf+6,2)}, v{WA} offset:{hh*2048+1024}")
    a("s_waitcnt lgkmcnt(0)")
    for c in range(4):
        a("s_barrier")
        if c in (0, 3): st()
        for s in range(3): reads(8*c+s)
        for s in range(8):
            hh = 8*c + s
            bf = hh % NB
            if s + 3 < 8:
                reads(hh+3)
            a(f"s_waitcnt lgkmcnt({3*min(3, 7-s)})")
            a(f"v_mfma_f32_32x32x16_bf16 {vr(ACC,16)}, {vr(FB+8*bf+4,4)}, {vr(FB+8*bf,4)}, {vr(ACC,16)}")
    a(f"s_cmp_ge_u32 s2, {NFFN}")
    a(f"s_cbranch_scc1 {name}_nob4")
    a("s_barrier")
    a.label(f"{name}_nob4")
    st()
    a("s_waitcnt vmcnt(0)")
    for q in range(2):
        a(f"v_permlane32_swap_b32 v{XR+4*q}, v{XR+4*q+2}")
        a(f"v_permlane32_swap_b32 v{XR+4*q+1}, v{XR+4*q+3}")
    a(f"v_mov_b32 v{S1}, 0")
    a(f"v_mov_b32 v{S2}, 0")
    a(f"v_mov_b32 v{SW}, 0")
    a("s_nop 4")
    for i in range(8):
        a(f"v_cvt_pk_bf16_f32 v{T}, v{ACC+2*i}, v{ACC+2*i+1}")
        add_pair(a, HP+i, T, XR+i, ACC+2*i, ACC+2*i+1, T2, T3)
    for i in range(8):
        a(f"v_dot2_f32_bf16 v{S1}, v{HP+i}, v{ONES}, v{S1}")
        a(f"v_dot2_f32_bf16 v{S2}, v{HP+i}, v{HP+i}, v{S2}")
        a(f"v_dot2_f32_bf16 v{SW}, v{HP+i}, v{WR+i}, v{SW}")
    for q in range(2):
        a(f"v_permlane32_swap_b32 v{HP+4*q}, v{HP+4*q+2}")
        a(f"v_permlane32_swap_b32 v{HP+4*q+1}, v{HP+4*q+3}")
    a(f"v_mov_b32 v{T}, v{SW}")
    a(f"s_add_u32 s33, s37, {HB}")
    a("s_nop 0")
    a(f"v_permlane32_swap_b32 v{S1}, v{S2}")
    a(f"v_permlane32_swap_b32 v{SW}, v{T}")
    a("s_nop 1")
    a(f"v_add_f32 v{S1}, v{S1}, v{S2}")
    a(f"v_add_f32 v{SW}, v{SW}, v{T}")
    a(f"v_lshlrev_b32 v{T}, 2, v{R31}")
    a(f"v_lshl_add_u32 v{T2}, v{HALF}, 13, v{T}")
    a(f"s_lshl_b32 s45, s36, 7")
    a(f"s_add_u32 s45, s45, {ST}")
    a(f"s_add_u32 s46, s45, 16384")
    a(f"buffer_atomic_add_f32 v{S1}, v{T2}, s[24:27], s45 offen")
    a(f"s_mov_b32 exec_hi, 0")
    a(f"buffer_atomic_add_f32 v{SW}, v{T}, s[24:27], s46 offen")
    a(f"s_mov_b64 exec, -1")
    a(f"buffer_store_dwordx4 {vr(HP,4)}, v{XO}, s[24:27], s33 offen sc1")
    a(f"buffer_store_dwordx4 {vr(HP+4,4)}, v{XO}, s[24:27], s33 offen offset:32 sc1")
    a(f"s_lshl_b32 s40, s36, 6")
    a(f"s_add_u32 s40, s40, {FL3}")
    a(f"s_lshl_b32 s3, s47, 2")
    a(f"s_add_u32 s41, s40, s3")
    a(f"v_mov_b32 v{T3}, 0")
    a(f"v_mov_b32 v{T4}, 1")
    srd(a, 12, 54, 55, 2097152)
    st()
    a("s_waitcnt vmcnt(0)")
    a("s_mov_b64 exec, 1")
    a(f"buffer_store_dword v{T4}, v{T3}, s[24:27], s41 offen sc1")
    a("s_mov_b64 exec, -1")
    st()
    a(f"s_cmp_ge_u32 s2, {NFFN}")
    a(f"s_cbranch_scc1 {name}_own1")
    a(f"s_cmp_eq_u32 s34, 0")
    a(f"s_cselect_b32 s16, s48, s50")
    a(f"s_cselect_b32 s17, s49, s51")
    a(f"s_mov_b32 s18, {512*1376*2}")
    a(f"s_mov_b32 s19, 0x20000")
    srd(a, 28, 52, 53, 512*1376*2)
    GV = OFr; DVv = OFr + 1; AA = OFr + 2; AD = OFr + 3
    a(f"v_lshrrev_b32 v{T}, 1, v{LANE}")
    a(f"v_mul_u32_u24 v{T}, 2752, v{T}")
    a(f"v_and_b32 v{T2}, 1, v{LANE}")
    a(f"v_lshl_add_u32 v{GV}, v{T2}, 4, v{T}")
    a(f"v_lshrrev_b32 v{T}, 4, v{LANE}")
    a(f"v_lshlrev_b32 v{T}, 10, v{T}")
    a(f"v_and_b32 v{T2}, 15, v{LANE}")
    a(f"v_lshl_add_u32 v{DVv}, v{T2}, 4, v{T}")
    a(f"s_mul_i32 s42, s43, 24576")
    a(f"s_lshl_b32 s45, s2, 6")
    a(f"s_lshl_b32 s3, s35, 5")
    a(f"s_add_u32 s45, s45, s3")
    for i in range(16):
        a(f"s_add_u32 m0, s42, {i*1024}")
        a(f"s_add_u32 s33, s45, {i*32*2752}")
        a(f"buffer_load_dwordx4 v{GV}, s[16:19], s33 offen lds")
    a(f"s_lshl_b32 s45, s2, 15")
    a(f"s_lshl_b32 s3, s43, 8")
    a(f"s_add_u32 s45, s45, s3")
    for i in range(8):
        a(f"s_add_u32 m0, s42, {16384 + i*1024}")
        a(f"s_add_u32 s33, s45, {i*4096}")
        a(f"buffer_load_dwordx4 v{DVv}, s[28:31], s33 offen lds")
    a(f"v_lshrrev_b32 v{T}, 4, v{LANE}")
    a(f"v_bfe_u32 v{T2}, v{LANE}, 2, 2")
    a(f"v_lshl_add_u32 v{T3}, v{T}, 3, v{T2}")
    a(f"v_lshlrev_b32 v{AA}, 5, v{T3}")
    a(f"v_and_b32 v{T3}, 3, v{LANE}")
    a(f"v_lshl_add_u32 v{AA}, v{T3}, 3, v{AA}")
    a(f"v_add_u32 v{AA}, s42, v{AA}")
    a(f"v_lshl_add_u32 v{T2}, v{T}, 2, v{T2}")
    a(f"v_lshlrev_b32 v{AD}, 8, v{T2}")
    a(f"v_lshl_add_u32 v{AD}, v{T3}, 3, v{AD}")
    a(f"v_add_u32 v{AD}, s42, v{AD}")
    a("s_waitcnt vmcnt(0)")
    for ks in range(16):
        a(f"ds_read_b64_tr_b16 {vr(AF+4*ks,2)}, v{AA} offset:{ks*1024}")
        a(f"ds_read_b64_tr_b16 {vr(AF+4*ks+2,2)}, v{AA} offset:{ks*1024+128}")
        if ks % 4 == 3: a("s_waitcnt lgkmcnt(4)")
    for nb in range(8):
        a(f"ds_read_b64_tr_b16 {vr(DAF+4*nb,2)}, v{AD} offset:{16384+nb*32}")
        a(f"ds_read_b64_tr_b16 {vr(DAF+4*nb+2,2)}, v{AD} offset:{16384+4096+nb*32}")
        if nb % 4 == 3: a("s_waitcnt lgkmcnt(4)")
    a.label(f"{name}_own1")
    st()
    a(f"s_cmp_ge_u32 s2, {NFFN}")
    a(f"s_cbranch_scc1 {name}_own2")
    BF = 12
    G = 44; U = 48; DY = 12
    BA = 56
    a(f"v_lshrrev_b32 v{T}, 4, v{LANE}")
    a(f"v_and_b32 v{T2}, 7, v{LANE}")
    a(f"v_mul_u32_u24 v{T2}, 1040, v{T2}")
    a(f"v_lshl_add_u32 v{BA}, v{T}, 4, v{T2}")
    a(f"v_add_u32 v{BA}, {XS}, v{BA}")
    a(f"s_lshl_b32 s3, s35, 10")
    a(f"s_add_u32 s3, s3, {UX}")
    a(f"v_add_u32 v{BA+1}, s3, v{DV}")
    a(f"s_lshl_b32 s3, s35, 3")
    a(f"s_add_u32 s3, s3, {ACT}")
    a(f"v_add_u32 v{BA+2}, s3, v{DV}")
    a(f"v_add_u32 v{BA+3}, {ACT}, v{DV}")
    a(f"v_and_b32 v{T2}, 7, v{LANE}")
    a(f"s_mov_b32 s3, {43*2048}")
    a(f"v_mul_lo_u32 v{T2}, v{T2}, s3")
    a(f"v_lshl_add_u32 v{T5}, v{T}, 4, v{T2}")
    a(f"s_lshl_b32 s45, s2, 11")
    a(f"s_lshl_b32 s3, s43, 9")
    a(f"s_add_u32 s45, s45, s3")
    a(f"s_add_u32 s45, s45, {YP2}")
    a("s_waitcnt lgkmcnt(0)")
    a("s_barrier")
    st()
    for ks in range(8):
        a(f"ds_read_b128 {vr(BF+4*ks,4)}, v{BA} offset:{ks*64}")
    for ks in range(16):
        a(f"s_waitcnt lgkmcnt({7 if ks < 8 else 15-ks})")
        c_in = "0" if ks == 0 else vr(G, 4)
        a(f"v_mfma_f32_16x16x32_bf16 {vr(G,4)}, {vr(AF+4*ks,4)}, {vr(BF+4*(ks%8),4)}, {c_in}")
        if ks < 8:
            a(f"ds_read_b128 {vr(BF+4*ks,4)}, v{BA} offset:{(ks+8)*64}")
    a("s_nop 7")
    for r in range(4):
        bf16r(a, G+r, G+r)
    a(f"s_cmp_eq_u32 s34, 0")
    a(f"s_cbranch_scc1 {name}_gw")
    a(f"ds_write_b128 v{BA+1}, {vr(G,4)}")
    a("s_waitcnt lgkmcnt(0)")
    a("s_barrier")
    a(f"s_branch {name}_dn")
    a.label(f"{name}_gw")
    for r in range(4):
        a(f"v_mul_f32 v{U+4+r}, {hex(f32bits(-1.4426950408889634))}, v{G+r}")
    for r in range(4):
        a(f"v_exp_f32 v{U+4+r}, v{U+4+r}")
    for r in range(4):
        a(f"v_add_f32 v{U+4+r}, 1.0, v{U+4+r}")
    for r in range(4):
        a(f"v_rcp_f32 v{U+4+r}, v{U+4+r}")
    for r in range(4):
        a(f"v_mul_f32 v{G+r}, v{G+r}, v{U+4+r}")
    for r in range(4):
        bf16r(a, G+r, G+r)
    a("s_barrier")
    a(f"ds_read_b128 {vr(U,4)}, v{BA+1}")
    a("s_waitcnt lgkmcnt(0)")
    for r in range(4):
        a(f"v_mul_f32 v{G+r}, v{G+r}, v{U+r}")
    a(f"v_cvt_pk_bf16_f32 v{G}, v{G}, v{G+1}")
    a(f"v_cvt_pk_bf16_f32 v{G+1}, v{G+2}, v{G+3}")
    a(f"ds_write_b64 v{BA+2}, {vr(G,2)}")
    a("s_waitcnt lgkmcnt(0)")
    a.label(f"{name}_dn")
    a("s_barrier")
    a(f"ds_read_b128 {vr(U,4)}, v{BA+3}")
    a(f"s_mov_b32 s56, 0x00ff00ff")
    a(f"s_mov_b32 s57, 0x00ff00ff")
    a("s_waitcnt lgkmcnt(0)")
    for nb in range(8):
        a(f"v_mfma_f32_16x16x32_bf16 {vr(DY+4*nb,4)}, {vr(DAF+4*nb,4)}, {vr(U,4)}, 0")
    a(f"s_lshl_b32 s41, s2, 4")
    a(f"s_lshl_b32 s3, s43, 2")
    a(f"s_add_u32 s41, s41, s3")
    a(f"s_add_u32 s41, s41, {FL3+8192}")
    a(f"v_mov_b32 v{T3}, 0")
    a(f"v_mov_b32 v{T4}, 1")
    a("s_nop 3")
    a(f"s_mov_b64 exec, s[56:57]")
    for nb in range(8):
        a(f"buffer_store_dwordx4 {vr(DY+4*nb,4)}, v{T5}, s[24:27], s45 offen offset:{nb*64} sc1")
    a("s_waitcnt vmcnt(0)")
    a("s_mov_b64 exec, 1")
    a(f"buffer_store_dword v{T4}, v{T3}, s[24:27], s41 offen sc1")
    a("s_mov_b64 exec, -1")
    a.label(f"{name}_own2")
    st()
    IX = 12
    a(f"v_and_b32 v{T}, 7, v{LANE}")
    a(f"v_lshlrev_b32 v{T5}, 2, v{T}")
    a(f"s_mov_b32 s41, {SELF+64}")
    poll(a, name, "ps", [f"buffer_load_dword v{IX}, v{T5}, s[24:27], s41 offen sc1"],
         [f"v_cmp_ne_u32 vcc, 0, v{IX}", "s_cmp_eq_u64 vcc, exec"], sleep=12)
    st()
    a(f"v_lshlrev_b32 v{T}, 2, v{R31}")
    a(f"s_lshl_b32 s45, s36, 7")
    a(f"s_add_u32 s45, s45, {ST}")
    a(f"s_add_u32 s46, s45, 8192")
    a(f"buffer_load_dword v{S1}, v{T}, s[24:27], s45 offen sc1")
    a(f"buffer_load_dword v{S2}, v{T}, s[24:27], s46 offen sc1")
    a("s_waitcnt vmcnt(0)")
    stats_to_mb_rs(a, S1, S2)
    for i in range(8):
        norm_pair(a, HS+i, HP+i, f"v{S1}", f"v{S2}", T, T2)
        add_pair(a, HS+i, HS+i, HP+i, T, T2, T3, T4)
    for i in range(8):
        a(f"v_readlane_b32 s{56+i}, v{IX}, {i}")
    a(f"s_lshl_b32 s42, s36, 5")
    a(f"s_add_u32 s42, s42, 1")
    a(f"v_add_u32 v{T}, s42, v{R31}")
    a(f"s_mov_b64 s[46:47], 0")
    for i in range(8):
        a(f"v_cmp_eq_u32 vcc, s{56+i}, v{T}")
        a(f"s_or_b64 s[46:47], s[46:47], vcc")
    a(f"s_andn2_b64 exec, exec, s[46:47]")
    a(f"buffer_store_dwordx4 {vr(HS,4)}, v{XO}, s[12:15], s37 offen")
    a(f"buffer_store_dwordx4 {vr(HS+4,4)}, v{XO}, s[12:15], s37 offen offset:32")
    a("s_mov_b64 exec, -1")
    st()
    a(f"s_cmp_eq_u64 s[46:47], 0")
    a(f"s_cbranch_scc1 {name}_cdone")
    a(f"s_lshl_b32 s3, s22, 1")
    a(f"s_add_u32 s39, s3, s35")
    a(f"v_min_u32 v{T}, 42, v{LANE}")
    a(f"v_lshlrev_b32 v{T5}, 4, v{T}")
    a(f"s_lshr_b32 s3, s39, 2")
    a(f"s_lshl_b32 s3, s3, 2")
    a(f"s_add_u32 s41, s3, {FL3+8192}")
    poll(a, name, "p4", [f"buffer_load_dword v{T}, v{T5}, s[24:27], s41 offen sc1"],
         [f"v_cmp_ne_u32 vcc, 0, v{T}", "s_cmp_eq_u64 vcc, exec"])
    SG = 13
    a(f"v_and_b32 v{T}, 7, v{LANE}")
    a(f"v_lshlrev_b32 v{T5}, 2, v{T}")
    a(f"s_mov_b32 s41, {SELF+128}")
    poll(a, name, "p5", [f"buffer_load_dword v{SG}, v{T5}, s[24:27], s41 offen sc1"],
         [f"v_and_b32 v{T2}, 1, v{SG}", f"v_cmp_ne_u32 vcc, 0, v{T2}", "s_cmp_eq_u64 vcc, exec"])
    st()
    PV_ = 14; HV = 15; P = 16; Y = 40; HH = 44; HN2 = 46; TM = 48
    a(f"v_and_b32 v{SG}, s44, v{SG}")
    a(f"v_lshrrev_b32 v{T2}, 3, v{LANE}")
    a(f"v_lshlrev_b32 v{T2}, 11, v{T2}")
    a(f"v_lshl_add_u32 v{PV_}, v{T}, 4, v{T2}")
    a(f"v_lshlrev_b32 v{HV}, 3, v{T}")
    a(f"v_cmp_gt_u32 s[48:49], 24, v{LANE}")
    for i in range(8):
        lab = a.newlabel(f"{name}_tk")
        a(f"s_sub_u32 s33, s{56+i}, s42")
        a(f"s_cmp_ge_u32 s33, 32")
        a(f"s_cbranch_scc1 {lab}")
        a(f"s_lshl_b32 s45, s39, 7")
        a(f"s_add_u32 s45, s45, {YP2 + i*43*2048}")
        for r in range(4):
            a(f"v_mov_b32 v{P+20+r}, 0")
        for k in range(5):
            a(f"s_add_u32 s3, s45, {k*16384}")
            a(f"buffer_load_dwordx4 {vr(P+4*k,4)}, v{PV_}, s[24:27], s3 offen sc1")
        a(f"s_add_u32 s3, s45, {5*16384}")
        a(f"s_mov_b64 exec, s[48:49]")
        a(f"buffer_load_dwordx4 {vr(P+20,4)}, v{PV_}, s[24:27], s3 offen sc1")
        a(f"s_mov_b64 exec, -1")
        a(f"s_lshl_b32 s41, s33, 10")
        a(f"s_add_u32 s41, s41, s37")
        a(f"s_add_u32 s3, s41, {HB}")
        a(f"buffer_load_dwordx2 {vr(HH,2)}, v{HV}, s[24:27], s3 offen sc1")
        a(f"v_readlane_b32 s50, v{S1}, s33")
        a(f"v_readlane_b32 s51, v{S2}, s33")
        a(f"v_readlane_b32 s52, v{SG}, {i}")
        a("s_waitcnt vmcnt(0)")
        for c in range(4):
            a(f"v_add_f32 v{Y+c}, v{P+c}, v{P+4+c}")
            a(f"v_add_f32 v{P+8+c}, v{P+8+c}, v{P+12+c}")
            a(f"v_add_f32 v{P+16+c}, v{P+16+c}, v{P+20+c}")
            a(f"v_add_f32 v{Y+c}, v{Y+c}, v{P+8+c}")
            a(f"v_add_f32 v{Y+c}, v{Y+c}, v{P+16+c}")
        a("s_nop 1")
        for c in range(4):
            a(f"v_add_f32_dpp v{Y+c}, v{Y+c}, v{Y+c} row_ror:8 row_mask:0xf bank_mask:0xf")
        for sw in ("v_permlane16_swap_b32", "v_permlane32_swap_b32"):
            for c in range(4):
                a(f"v_mov_b32 v{TM+c}, v{Y+c}")
            for c in range(4):
                a(f"{sw} v{Y+c}, v{TM+c}")
            for c in range(4):
                a(f"v_add_f32 v{Y+c}, v{Y+c}, v{TM+c}")
        for c in range(4):
            bf16r(a, Y+c, Y+c)
            a(f"v_mul_f32 v{Y+c}, s52, v{Y+c}")
        a(f"v_cvt_pk_bf16_f32 v{Y}, v{Y}, v{Y+1}")
        a(f"v_cvt_pk_bf16_f32 v{Y+1}, v{Y+2}, v{Y+3}")
        for h in range(2):
            norm_pair(a, HN2+h, HH+h, "s50", "s51", TM, TM+1)
            add_pair(a, Y+h, Y+h, HN2+h, TM, TM+1, TM+2, TM+3)
            add_pair(a, Y+h, Y+h, HH+h, TM, TM+1, TM+2, TM+3)
        a(f"s_mov_b64 exec, 0xff")
        a(f"buffer_store_dwordx2 {vr(Y,2)}, v{HV}, s[12:15], s41 offen")
        a(f"s_mov_b64 exec, -1")
        a.label(lab)
    a.label(f"{name}_cdone")
    st()
    st.flush(8, 9, 20, 12)
    a.label(f"{name}_end")
    a("s_endpgm")
    return 180, ACT + 1024
```

```python
MB = 1 << 20
QF = 0
KV = 2 * MB
OF = 6 * MB
HB = 8 * MB
ST = 10 * MB
YP = 11 * MB
SEL = 12 * MB
WS_USED = 13 * MB
QSCALE = 0.25 * 1.4426950408889634
FL1 = 12 * MB + 65536
FL3 = 12 * MB + 131072
FL4 = FL3 + 4096
SELF = FL3 + 4096 + 256
YP2 = 11 * MB
```

```python
import sys
from asmlib import *
from layout import *
import os, k1, k2, k3, k4, kf, kt
OUT = "sequential_preLN__mha_block__moe_arch_mod__prompt.s"
def main(out=OUT):
    ref = open("sequential_preLN__mha_block__moe_arch_mod__prompt.s.ref").read().split("\n")
    head = [l for l in ref[:12] if l.startswith(";")]
    a = Asm()
    vf = kf.gen_front(a)
    vt, ldst = kt.gen_tail(a)
    launches = [
        f"; @launch kernel=front_kernel grid=(256,1,1) block=(576,1,1) lds=163840",
        f"; @launch kernel=tail_kernel grid=(256,1,1) block=(512,1,1) lds={ldst}",
    ]
    txt = "\n".join(head + launches) + "\n"
    txt += '.amdgcn_target "amdgcn-amd-amdhsa--gfx950"\n.text\n'
    body = a.text().replace("front_kernel:\n", "front_kernel:\ntext_start:\n", 1)
    txt += body + "text_end:\n"
    txt += '.section .rodata,"a"\n'
    for n, v in (("front_kernel", vf), ("tail_kernel", vt)):
        txt += kernel_desc(n, v)
    open(out, "w").write(txt)
if __name__ == "__main__":
    main(*sys.argv[1:])
```
